```python
import torch

def _softmax(x, axis=-1):
    return torch.softmax(x, dim=axis)
def _gelu(x):
    return torch.nn.functional.gelu(x, approximate="tanh")
def _silu(x):
    return torch.nn.functional.silu(x)
def _sigmoid(x):
    return torch.sigmoid(x)
def _layernorm(x, axis=-1, eps=1e-5):
    m = x.mean(dim=axis, keepdim=True)
    v = x.var(dim=axis, keepdim=True, unbiased=False)
    return (x - m) / torch.sqrt(v + eps)
def _scatter_add(tgt, idx, src, axis=0):
    return tgt.clone().index_add_(axis, idx, src)
def _segment_sum(src, seg, n):
    out = torch.zeros((n,) + src.shape[1:], dtype=src.dtype)
    return out.index_add_(0, seg, src)
def _pad(x, pw):
    flat = tuple(v for pair in reversed(pw) for v in pair)
    return torch.nn.functional.pad(x, flat)

kernel_name = 'interleave_layers__linear_attn_block__glu_gated_swiglu__prompt'

def setup_inputs():

    _w = (lambda a: (lambda t: t.to(torch.bfloat16) if t.is_floating_point() else t)(torch.as_tensor(a)))
    def _A_setup():
        B, S, D = 1, 2048, 512
        return {
            "x": _w((lambda *s: torch.randn(*s, dtype=torch.bfloat16) * 0.05)(B, S, D)),
            "wqkv": _w((lambda *s: torch.randn(*s, dtype=torch.bfloat16) * 0.05)(D, 3 * D)),
            "wo": _w((lambda *s: torch.randn(*s, dtype=torch.bfloat16) * 0.05)(D, D)),
        }
    _A_in = _A_setup()

    def _B_setup():
        B, S, D, F = 1, 2048, 512, 1792
        return {
            "x": _w((lambda *s: torch.randn(*s, dtype=torch.bfloat16) * 0.05)(B, S, D)),
            "w1": _w((lambda *s: torch.randn(*s, dtype=torch.bfloat16) * 0.4)(D, F) * (2.0 / D) ** 0.5),
            "w3": _w((lambda *s: torch.randn(*s, dtype=torch.bfloat16) * 0.4)(D, F) * (2.0 / D) ** 0.5),
            "w2": _w((lambda *s: torch.randn(*s, dtype=torch.bfloat16) * 0.4)(F, D) * (2.0 / F) ** 0.5),
        }
    _B_in = _B_setup()

    return {
        "A_x": _A_in["x"],
        "A_wqkv": _A_in["wqkv"],
        "A_wo": _A_in["wo"],
        "B_x": _B_in["x"],
        "B_w1": _B_in["w1"],
        "B_w3": _B_in["w3"],
        "B_w2": _B_in["w2"],
    }

def reference(A_x, A_wqkv, A_wo, B_x, B_w1, B_w3, B_w2):
    def _A_ref(x, wqkv, wo):
        B, S, D = x.shape
        H = 32; Dh = D // H
        qkv = (lambda x, *d: x.permute(*d))((x @ wqkv).reshape(B, S, 3, H, Dh), 2, 0, 3, 1, 4)
        q, k, v = qkv[0], qkv[1], qkv[2]
        phi = lambda t: torch.where(t > 0, t + 1, torch.exp(t)) + 1e-6
        pq, pk = phi(q), phi(k)
        kv = torch.einsum("bhsd,bhse->bhde", pk, v)
        z = torch.einsum("bhsd->bhd", pk)
        num = torch.einsum("bhqd,bhde->bhqe", pq, kv)
        den = torch.einsum("bhqd,bhd->bhq", pq, z)[..., None] + 1e-6
        o = num / den
        return (lambda x, *d: x.permute(*d))(o, 0, 2, 1, 3).reshape(B, S, D) @ wo

    def _B_ref(x, w1, w3, w2):
        gate = torch.einsum("bsd,df->bsf", x, w1)
        up = torch.einsum("bsd,df->bsf", x, w3)
        h = _silu(gate) * up
        out = torch.einsum("bsf,fd->bsd", h, w2)
        return out

    x = A_x
    x = x + _A_ref(_layernorm(x, axis=-1), A_wqkv, A_wo)
    x = x + _B_ref(_layernorm(x, axis=-1), B_w1, B_w3, B_w2)
    x = x + _A_ref(_layernorm(x, axis=-1), A_wqkv, A_wo)
    x = x + _B_ref(_layernorm(x, axis=-1), B_w1, B_w3, B_w2)
    return x
```

```python
import re, itertools

class R:
    __slots__ = ("k", "i", "n")
    def __init__(self, k, i, n=1):
        self.k, self.i, self.n = k, i, n
    def __str__(self):
        if self.n == 1: return f"{self.k}{self.i}"
        return f"{self.k}[{self.i}:{self.i+self.n-1}]"
    __repr__ = __str__
    def __getitem__(self, x):
        if isinstance(x, slice):
            a = x.start or 0; b = self.n if x.stop is None else x.stop
            assert 0 <= a < b <= self.n, (self, x)
            return R(self.k, self.i + a, b - a)
        assert 0 <= x < self.n, (self, x)
        return R(self.k, self.i + x, 1)
    def regs(self):
        return [(self.k, self.i + j) for j in range(self.n)]
def V(i, n=1): return R("v", i, n)
def A(i, n=1): return R("a", i, n)
def S(i, n=1): return R("s", i, n)
VCC = R("s", 106, 2); VCC.__class__
EXEC = R("s", 126, 2)
M0 = R("s", 124, 1)
class Special(R):
    def __init__(self, name, r):
        super().__init__(r.k, r.i, r.n); self.name = name
    __slots__ = ("name",)
    def __str__(self): return self.name
vcc = Special("vcc", VCC); exec_ = Special("exec", EXEC); m0 = Special("m0", M0)
SCC = ("c", 0)

TRANS = ("v_exp_f32", "v_log_f32", "v_rcp_f32", "v_rsq_f32", "v_sqrt_f32", "v_sin_f32", "v_cos_f32")

class I:
    __slots__ = ("mn", "ops", "mods", "cond", "rd", "wr", "kind", "tag", "text", "pre_vm", "pre_lg", "pre_nop", "cmt", "uid", "waittags")
    def __init__(self, mn, ops, mods, cond, tag=None, cmt=None):
        self.mn, self.ops, self.mods, self.cond, self.tag, self.cmt = mn, ops, mods, cond, tag, cmt
        self.pre_vm = None; self.pre_lg = None; self.pre_nop = 0; self.waittags = None
        self.classify()
    def classify(self):
        mn, ops = self.mn, self.ops
        regs = [o for o in ops if isinstance(o, R)]
        def rs(l):
            out = []
            for o in l:
                if isinstance(o, R): out += o.regs()
            return out
        rd, wr = [], []
        k = "other"
        if mn.startswith("v_mfma"):
            k = "mfma"; wr = rs(ops[:1]); rd = rs(ops[1:])
        elif mn.startswith("buffer_load") or mn.startswith("global_load"):
            if "lds" in self.mods.split():
                k = "vm"; rd = rs(ops) + M0.regs()
            else:
                k = "vm"; wr = rs(ops[:1]); rd = rs(ops[1:])
                if "d16" in mn: rd += wr
        elif mn.startswith("buffer_store") or mn.startswith("global_store"):
            k = "vmst"; rd = rs(ops)
        elif mn.startswith("buffer_atomic") or mn.startswith("global_atomic"):
            k = "vmst"; rd = rs(ops)
            if "sc0" in self.mods.split(): wr = rs(ops[:1]); k = "vm"
        elif mn.startswith("ds_read") or mn.startswith("ds_bpermute") or mn.startswith("ds_swizzle"):
            k = "ds"; wr = rs(ops[:1]); rd = rs(ops[1:])
        elif mn.startswith("ds_write"):
            k = "dsw"; rd = rs(ops)
        elif mn.startswith("s_load") or mn.startswith("s_buffer_load") or mn.startswith("s_memrealtime") or mn.startswith("s_memtime"):
            k = "smem"; wr = rs(ops[:1]); rd = rs(ops[1:])
        elif mn in ("s_waitcnt", "s_barrier", "s_nop", "label", "s_endpgm", "s_setprio", "s_sleep", "raw", "waittag", "comment") or mn.startswith("s_branch"):
            k = mn if mn in ("s_waitcnt", "s_barrier", "s_nop", "label", "waittag", "comment") else "salu"
        elif mn.startswith("s_cbranch"):
            k = "salu"
            if "scc" in mn: rd = [SCC]
            if "vcc" in mn: rd = VCC.regs()
            if "exec" in mn: rd = EXEC.regs()
        elif mn.startswith("s_cmp") or mn.startswith("s_bitcmp"):
            k = "salu"; rd = rs(ops); wr = [SCC]
        elif mn.startswith("s_"):
            k = "salu"; wr = rs(ops[:1]); rd = rs(ops[1:])
            if mn in ("s_cselect_b32", "s_cselect_b64", "s_addc_u32", "s_subb_u32"): rd += [SCC]
            if mn in ("s_addk_i32", "s_mulk_i32"): rd += wr
            if "saveexec" in mn: rd += EXEC.regs(); wr += EXEC.regs()
            if not (mn.startswith("s_mov") or mn.startswith("s_cselect") or mn.startswith("s_mul") or mn.startswith("s_getreg") or mn.startswith("s_getpc") or mn.startswith("s_movk")):
                wr += [SCC]
        elif mn.startswith("v_"):
            k = "valu"
            if mn.startswith("v_cmp"):
                wr = rs(ops[:1]); rd = rs(ops[1:])
            elif mn.startswith("v_permlane") and "swap" in mn:
                wr = rs(ops[:2]); rd = rs(ops[:2])
            elif mn.startswith("v_add_co") or mn.startswith("v_sub_co") or mn.startswith("v_addc_co") or mn.startswith("v_subb_co"):
                wr = rs(ops[:2]); rd = rs(ops[2:])
            else:
                wr = rs(ops[:1]); rd = rs(ops[1:])
                if mn.startswith("v_fmac") or mn.startswith("v_dot2c") or mn.startswith("v_writelane") or mn.startswith("v_pk_fmac"): rd += wr
            rd += EXEC.regs() if False else []
        else:
            raise ValueError("unknown mnemonic " + mn)
        self.rd, self.wr, self.kind = rd, wr, k
    def render(self):
        if self.mn == "label": return f"{self.ops[0]}:"
        if self.mn == "comment": return f"; {self.ops[0]}"
        if self.mn == "raw": return self.ops[0]
        if self.mn == "waittag": return None
        s = self.mn
        if self.ops: s += " " + ", ".join(str(o) for o in self.ops)
        if self.mods: s += " " + self.mods
        if self.cmt: s += "   ; " + self.cmt
        return "    " + s

class K:
    def __init__(self):
        self.items = []
        self.cond = ()
        self.uid = 0
        self.sink = None
    def label_name(self, base):
        self.uid += 1
        return f"L_{base}_{self.uid}"
    def emit(self, mn, *ops, mods="", tag=None, cmt=None):
        it = I(mn, list(ops), mods, self.cond, tag, cmt)
        (self.sink if self.sink is not None else self.items).append(it)
        return it
    def __getattr__(self, mn):
        if mn.startswith(("v_", "s_", "ds_", "buffer_", "global_")):
            def f(*ops, mods="", tag=None, cmt=None): return self.emit(mn, *ops, mods=mods, tag=tag, cmt=cmt)
            return f
        raise AttributeError(mn)
    def label(self, name): self.emit("label", name)
    def comment(self, t): self.emit("comment", t)
    def waittag(self, *tags):
        it = self.emit("waittag"); it.waittags = tags; return it
    def put(self, its):
        for it in its:
            it.cond = self.cond if not it.cond else it.cond
            (self.sink if self.sink is not None else self.items).append(it)
    class _Cap:
        def __init__(s, k): s.k = k
        def __enter__(s): s.old = s.k.sink; s.l = []; s.k.sink = s.l; return s.l
        def __exit__(s, *a): s.k.sink = s.old
    def capture(self): return K._Cap(self)
    class _Cond:
        def __init__(s, k, key, val, test, skip_br):
            s.k, s.key, s.val, s.test, s.skip_br = k, key, val, test, skip_br
        def __enter__(s):
            k = s.k
            s.lab = k.label_name("skip")
            s.test()
            k.emit(s.skip_br, s.lab)
            s.old = k.cond
            k.cond = k.cond + ((s.key, s.val),)
        def __exit__(s, *a):
            s.k.cond = s.old
            s.k.label(s.lab)
    def when(self, key, val, test, skip_br):
        return K._Cond(self, key, val, test, skip_br)

def linearize(items, cfg, loop=None):
    def ok(it, c):
        for key, val in it.cond:
            if c.get(key) not in val: return False
        return True
    if loop is None:
        return [it for it in items if ok(it, cfg)]
    start, end, iters = loop
    a = next(n for n, it in enumerate(items) if it.mn == "label" and it.ops[0] == start)
    b = next(n for n, it in enumerate(items) if it.mn == "label" and it.ops[0] == end)
    out = [it for it in items[:a] if ok(it, dict(cfg, **iters[0]))]
    for ov in iters:
        c = dict(cfg, **ov)
        out += [it for it in items[a:b] if ok(it, c)]
    out += [it for it in items[b:] if ok(it, dict(cfg, **iters[-1]))]
    return out

def parse_wait(it):
    vm = lg = None
    m = re.search(r"vmcnt\((\d+)\)", it.mods + " " + " ".join(map(str, it.ops)))
    if m: vm = int(m.group(1))
    m = re.search(r"lgkmcnt\((\d+)\)", it.mods + " " + " ".join(map(str, it.ops)))
    if m: lg = int(m.group(1))
    return vm, lg

def insert_waits(seq):
    changed = False
    vmq = []; lgq = []
    def drain(q, n):
        while len(q) > n: q.pop(0)
    for it in seq:
        need_vm = None; need_lg = None
        touched = set(it.rd) | set(it.wr)
        if it.mn == "waittag":
            for p, (d, tg) in enumerate(vmq):
                if tg in it.waittags: need_vm = len(vmq) - p - 1
            for p, (d, tg) in enumerate(lgq):
                if tg in it.waittags: need_lg = len(lgq) - p - 1
        elif touched:
            for p, (d, tg) in enumerate(vmq):
                if d & touched:
                    if it.kind == "vm" and not (d & set(it.rd)): continue
                    if it.kind == "vm" and "d16" in it.mn and not (d & (set(it.rd) - set(it.wr))): continue
                    need_vm = len(vmq) - p - 1
            for p, (d, tg) in enumerate(lgq):
                if d & touched:
                    if it.kind == "ds" and not (d & set(it.rd)): continue
                    need_lg = len(lgq) - p - 1
        if it.kind in ("vm", "vmst") and len(vmq) >= 63:
            need_vm = 62 if need_vm is None else min(need_vm, 62)
        if need_vm is not None:
            need_vm = min(need_vm, 63)
            if it.pre_vm is None or need_vm < it.pre_vm: it.pre_vm = need_vm; changed = True
        if need_lg is not None:
            need_lg = min(need_lg, 15)
            if it.pre_lg is None or need_lg < it.pre_lg: it.pre_lg = need_lg; changed = True
        if it.pre_vm is not None: drain(vmq, it.pre_vm)
        if it.pre_lg is not None: drain(lgq, it.pre_lg)
        if it.kind == "s_waitcnt":
            vm, lg = parse_wait(it)
            if vm is not None: drain(vmq, vm)
            if lg is not None: drain(lgq, lg)
        elif it.kind in ("vm", "vmst"):
            vmq.append((set(it.wr), it.tag))
        elif it.kind in ("ds", "dsw"):
            lgq.append((set(it.wr), it.tag))
        elif it.kind == "smem":
            lgq.append((set(it.wr), "smem"))
    return changed

def _states(it):
    n = 0
    if it.pre_nop: n += it.pre_nop
    if it.pre_vm is not None or it.pre_lg is not None: n += 1
    return n
def _self_states(it):
    if it.mn in ("label", "comment", "waittag"): return 0
    if it.mn == "s_nop": return int(it.ops[0]) + 1
    return 1

def insert_nops(seq, base_nop):
    changed = False
    hist = []
    pos = 0
    W = 24
    for it in seq:
        if it.mn in ("label", "comment"): continue
        pre = (1 if (it.pre_vm is not None or it.pre_lg is not None) else 0)
        if it.mn == "waittag":
            pos += pre; continue
        need = 0
        rd = set(it.rd); wr = set(it.wr)
        isvalu = it.kind == "valu"
        for (p, ppos) in reversed(hist):
            dist = pos + pre - ppos - 1
            if dist > W: break
            req = 0
            pw = set(p.wr); pr = set(p.rd)
            if p.kind == "valu":
                vw = {r for r in pw if r[0] in "va"}
                sw = {r for r in pw if r[0] == "s"}
                if vw & rd:
                    if it.kind == "mfma": req = max(req, 2)
                    if it.mn.startswith("v_permlane"): req = max(req, 2)
                    if it.mn.startswith("v_readlane") or it.mn.startswith("v_readfirstlane"): req = max(req, 1)
                    if "dpp" in it.mn or "row_" in it.mods or "quad_perm" in it.mods: req = max(req, 2)
                    if p.mn.split("_e")[0] in TRANS and isvalu and it.mn not in TRANS: req = max(req, 1)
                    if p.mn in TRANS and isvalu: req = max(req, 1)
                if sw & rd:
                    if it.kind in ("vm", "vmst"): req = max(req, 5)
                    elif isvalu:
                        req = max(req, 4 if (it.mn.startswith("v_readlane") or it.mn.startswith("v_writelane")) else 2)
                    elif it.kind == "salu": req = max(req, 1)
                if (set(EXEC.regs()) & pw) and it.kind in ("mfma", "valu"): req = max(req, 4)
            elif p.kind == "mfma":
                npass = 8 if "32x32" in p.mn else 4
                d = pw
                if d & (rd | wr):
                    if it.kind == "mfma":
                        c = set(it.ops[3].regs()) if isinstance(it.ops[3], R) else set()
                        ab = set(it.ops[1].regs()) | set(it.ops[2].regs())
                        if d & ab: req = max(req, npass + 4)
                        dd = set(it.ops[0].regs())
                        if d & c:
                            if not (c == d and str(it.mn) == str(p.mn)): req = max(req, npass + 2)
                        elif d & dd:
                            req = max(req, npass + 2)
                    else:
                        req = max(req, npass + 4)
                if isinstance(p.ops[3], R) and isvalu and (set(p.ops[3].regs()) & wr):
                    req = max(req, npass - 1)
            elif p.kind == "salu":
                if (set(M0.regs()) & pw) and it.kind == "vm" and "lds" in it.mods.split(): req = max(req, 1)
            elif p.kind == "vmst":
                if ("x4" in p.mn or "x3" in p.mn) and isinstance(p.ops[0], R):
                    data = set(p.ops[0].regs()) if p.mn.startswith("buffer") else set(p.ops[1].regs())
                    if data & wr: req = max(req, 2)
            if req > dist: need = max(need, req - dist)
        cur = base_nop.get(id(it), 0)
        if need > cur:
            base_nop[id(it)] = need; cur = need; changed = True
        it.pre_nop = cur
        pos += pre + cur
        hist.append((it, pos))
        pos += _self_states(it)
        if len(hist) > 64: hist = hist[-40:]
    return changed

def finalize(k, cfgs, loop=None):
    seqs = [linearize(k.items, c, loop) for c in cfgs]
    for _ in range(50):
        ch = False
        for s in seqs: ch |= insert_waits(s)
        if not ch: break
    else: raise RuntimeError("waits did not converge")
    base = {}
    for _ in range(50):
        ch = False
        for s in seqs: ch |= insert_nops(s, base)
        if not ch: break
    else: raise RuntimeError("nops did not converge")
    out = []
    for it in k.items:
        w = []
        if it.pre_vm is not None: w.append(f"vmcnt({it.pre_vm})")
        if it.pre_lg is not None: w.append(f"lgkmcnt({it.pre_lg})")
        n = base.get(id(it), 0)
        if w: out.append("    s_waitcnt " + " ".join(w))
        while n > 0:
            c = min(n, 16); out.append(f"    s_nop {c-1}"); n -= c
        r = it.render()
        if r is not None: out.append(r)
    return out
```

```python
import sys
from fw import *

NAME = "interleave_layers__linear_attn_block__glu_gated_swiglu__prompt_kernel"
KB = 1024
CNT   = 0x0000000
WQ    = 0x0100000; WQE = 0x0280000
WO    = 0x0300000
W13   = 0x0400000; W13E = 0x0780000
W2    = 0x0800000
XB    = 0x0A00000
SB    = 0x1200000
OB    = 0x1300000
KVP   = 0x1700000
HB_   = 0x1900000
STAMP = 0x3000000
C_H0R = 0; C_H0C = 16
def C_COL(L): return 32 + 96*L
def C_RO(L):  return 32 + 96*L + 16
def C_RX1(L): return 32 + 96*L + 32
def C_RHA(L): return 32 + 96*L + 48
def C_RHB(L): return 32 + 96*L + 64
def C_RX2(L): return 32 + 96*L + 80
NCNT = 32 + 192
L_SLOT = 32*KB
L_RED  = 96*KB
L_KVS  = 100*KB
L_WQE  = 144*KB
L_MISC = 148*KB
L_W13E = 152*KB
LDS_BYTES = 160*KB
sWS = S(4,4); sOUT = S(8,4); sXR = S(12,4)
sI = S(16); sJ = S(17); sW = S(18); sL = S(19)
sT = [S(20+i) for i in range(12)]
sP = S(32,20)
sDBG = S(52,4)
sSpin = S(56); sErr = S(57); sCnt = S(58); sTgt = S(59)
sUP16 = S(60,2); sHI = S(62,2); sLO16R = S(64,2)
sA = [S(66+i) for i in range(14)]
sSt = S(80,20)
vL0 = V(0); vL1 = V(1); vL2 = V(2); vLane = V(3); vOne = V(4); vTmp = V(5); vTmp2 = V(6); vM16 = V(7)

class Gen:
    def __init__(self, stop_after=None, stamps=False, opts=None):
        self.k = K()
        self.stop_after = stop_after
        self.stamps = stamps
        self.nst = 0
        self.o = dict(opts or {})
    def if_wave(self, waves):
        k = self.k
        waves = set(waves)
        def test():
            if len(waves) == 1: k.s_cmp_eq_u32(sW, list(waves)[0])
            elif waves == {1,2,3}: k.s_cmp_lg_u32(sW, 0)
            elif waves == {0,1}: k.s_cmp_lt_u32(sW, 2)
            else: raise ValueError(waves)
        return k.when("w", waves, test, "s_cbranch_scc0")
    def if_layer(self, L):
        k = self.k
        return k.when("L", {L}, lambda: k.s_cmp_eq_u32(sL, L), "s_cbranch_scc0")
    def stamp(self):
        if not self.stamps: return
        k = self.k
        assert self.nst < 10
        k.emit("raw", f"    s_memrealtime s[{80+2*self.nst}:{81+2*self.nst}]")
        self.nst += 1
    def cnt_off(self, dst, cidx_fn, grp):
        k = self.k
        c0, c1 = cidx_fn(0), cidx_fn(1)
        k.s_mul_i32(dst, sL, (c1-c0)*256)
        k.s_lshl_b32(sT[11], grp, 8)
        k.s_add_u32(dst, dst, sT[11])
        if c0: k.s_add_u32(dst, dst, c0*256)
    def arrive(self, cnt, wait_stores=True):
        k = self.k
        if wait_stores: k.s_waitcnt(mods="vmcnt(0) lgkmcnt(0)")
        k.s_barrier()
        with self.if_wave({0}):
            k.s_mov_b64(exec_, 1)
            k.buffer_atomic_add(vOne, "off", sWS, cnt)
            k.s_mov_b64(exec_, -1)
    def poll(self, cnt, target):
        k = self.k
        lp = k.label_name("poll"); done = k.label_name("got")
        k.s_mov_b64(exec_, 1)
        k.s_mov_b32(sSpin, 0)
        k.label(lp)
        k.buffer_load_dword(vTmp, "off", sWS, cnt, mods="sc1")
        k.s_add_u32(sSpin, sSpin, 1)
        k.s_waitcnt(mods="vmcnt(0)")
        k.v_readfirstlane_b32(sT[10], vTmp)
        k.s_cmp_ge_u32(sT[10], target)
        k.s_cbranch_scc1(done)
        k.s_cmp_lt_u32(sSpin, 0x40000)
        k.s_cbranch_scc1(lp)
        k.s_mov_b32(sErr, 1)
        k.label(done)
        k.s_mov_b64(exec_, -1)
    def wait(self, cnt, target=16):
        with self.if_wave({0}):
            self.poll(cnt, target)
        self.k.s_barrier()
    def frag_loads(self, dst_fn, n, soff, stride=KB, tag=None, tmp=None, lds=False):
        k = self.k
        per = 4 if stride == KB else 1
        for t in range(n):
            im = (t % per) * KB
            k.buffer_load_dwordx4(dst_fn(t), vL0, sWS, soff, mods=f"offen offset:{im} sc1" if im else "offen sc1", tag=tag)
            if (t % per) == per-1 and t != n-1:
                k.s_add_u32(soff, soff, per*stride)
    def dma(self, n, soff, ldsoff, tag):
        k = self.k
        for t in range(n):
            im = (t % 4) * KB
            if t % 4 == 0:
                k.s_mov_b32(m0, ldsoff)
            k.buffer_load_dwordx4(vL0, sWS, soff, mods=(f"offen offset:{im} sc1 lds" if im else "offen sc1 lds"), tag=tag)
            if t % 4 == 3 and t != n-1:
                k.s_add_u32(soff, soff, 4*KB)
                k.s_add_u32(ldsoff, ldsoff, 4*KB)
    def cross_half_add(self, x, t):
        k = self.k
        k.v_mov_b32(t, x)
        k.v_permlane32_swap_b32(x, t)
        k.v_add_f32(x, x, t)
    def block_stats(self, f, tmp, mean, m2):
        k = self.k
        t = tmp
        for i in range(4): k.v_pk_add_f32(t[2*i:2*i+2], f[4*i:4*i+2], f[4*i+2:4*i+4])
        k.v_pk_add_f32(t[0:2], t[0:2], t[2:4]); k.v_pk_add_f32(t[4:6], t[4:6], t[6:8])
        k.v_pk_add_f32(t[0:2], t[0:2], t[4:6])
        k.v_add_f32(mean, t[0], t[1])
        self.cross_half_add(mean, t[2])
        k.v_mul_f32(mean, 1.0/32, mean)
        for i in range(8):
            k.v_pk_add_f32(t[2*i:2*i+2], f[2*i:2*i+2], R("v", mean.i, 2) if False else V(mean.i, 2), mods="op_sel_hi:[1,0] neg_lo:[0,1] neg_hi:[0,1]")
        k.v_pk_mul_f32(f[0:2] if False else t[0:2], t[0:2], t[0:2])
        for i in range(1, 8):
            k.v_pk_fma_f32(t[0:2], t[2*i:2*i+2], t[2*i:2*i+2], t[0:2])
        k.v_add_f32(m2, t[0], t[1])
        self.cross_half_add(m2, t[2])
    def unpack(self, d, f):
        k = self.k
        for i in range(d.n):
            k.v_lshlrev_b32(f[2*i], 16, d[i])
            k.v_and_b32(f[2*i+1], 0xffff0000, d[i])
    def store_x_and_stats(self, pk, f, tmp, sX, sS, ms):
        k = self.k
        k.buffer_store_dwordx4(pk[0:4], vL0, sWS, sX, mods="offen sc1", tag="st")
        k.buffer_store_dwordx4(pk[4:8], vL0, sWS, sX, mods="offen offset:1024 sc1", tag="st")
        self.block_stats(f, tmp, ms[0], ms[1])
        k.buffer_store_dwordx2(ms, vM16, sWS, sS, mods="offen sc1", tag="st")
    def s_stat_off(self, dst, n_expr_s, mb, nb32, t0, t1):
        k = self.k
        k.s_lshl_b32(dst, n_expr_s, 18)
        k.s_lshl_b32(t0, mb, 12); k.s_add_u32(dst, dst, t0)
        k.s_lshr_b32(t0, nb32, 1); k.s_and_b32(t0, t0, 3); k.s_lshl_b32(t0, t0, 10); k.s_add_u32(dst, dst, t0)
        k.s_lshr_b32(t0, nb32, 3); k.s_lshl_b32(t0, t0, 9); k.s_add_u32(dst, dst, t0)
        k.s_and_b32(t0, nb32, 1); k.s_lshl_b32(t0, t0, 3); k.s_add_u32(dst, dst, t0)
        k.s_add_u32(dst, dst, SB)

    def prologue(self):
        k = self.k
        k.s_cmp_ge_u32(S(2), 256)
        k.s_cbranch_scc1("L_end")
        k.s_load_dwordx16(sP[0:16], S(0,2), 0)
        k.s_load_dwordx4(sP[16:20], S(0,2), 64)
        k.v_and_b32(vLane, 63, V(0))
        k.v_lshrrev_b32(vTmp, 6, V(0))
        k.v_readfirstlane_b32(sW, vTmp)
        k.s_and_b32(sT[0], S(2), 7); k.s_lshr_b32(sT[1], S(2), 3)
        k.s_lshr_b32(sT[2], sT[1], 4); k.s_lshl_b32(sT[2], sT[2], 3)
        k.s_add_u32(sI, sT[0], sT[2]); k.s_and_b32(sJ, sT[1], 15)
        k.s_mov_b32(sL, 0); k.s_mov_b32(sErr, 0)
        k.v_lshlrev_b32(vL0, 4, vLane)
        k.v_add_u32(vL1, 0x10000, vL0)
        k.v_add_u32(vL2, 0x20000, vL0)
        k.v_mov_b32(vOne, 1)
        k.v_and_b32(vM16, 31, vLane); k.v_lshlrev_b32(vM16, 4, vM16)
        k.s_mov_b32(sUP16[0], 0xffff0000); k.s_mov_b32(sUP16[1], 0xffff0000)
        k.s_mov_b32(sHI[0], 0); k.s_mov_b32(sHI[1], -1)
        k.s_waitcnt(mods="lgkmcnt(0)")
        for srd, p, n in ((sWS, sP[18:20], 0x10000000), (sOUT, sP[14:16], 2*1024*1024), (sXR, sP[0:2], 2*1024*1024), (sDBG, sP[16:18], 256)):
            k.s_mov_b32(srd[0], p[0]); k.s_mov_b32(srd[1], p[1]); k.s_mov_b32(srd[2], n); k.s_mov_b32(srd[3], 0x20000)

    def p0(self):
        k = self.k
        with k.when("wg0", {True}, lambda: (k.s_or_b32(sT[0], S(2), sW), k.s_cmp_eq_u32(sT[0], 0)), "s_cbranch_scc0"):
            k.v_lshlrev_b32(vTmp, 8, vLane)
            k.v_mov_b32(vTmp2, 0)
            for c in range(4):
                k.s_mov_b32(sT[1], CNT + c*64*256)
                k.buffer_store_dword(vTmp2, vTmp, sWS, sT[1], mods="offen sc1")
            k.s_waitcnt(mods="vmcnt(0)")
            k.s_mov_b64(exec_, 1)
            k.buffer_store_dword(vOne, "off", sDBG, 0, mods="sc1")
            k.s_mov_b64(exec_, -1)
        xr = V(8, 8)
        mb = sA[0]; nb = sA[1]
        k.s_lshr_b32(sT[0], sJ, 2); k.s_lshl_b32(mb, sI, 2); k.s_add_u32(mb, mb, sT[0])
        k.s_and_b32(sT[0], sJ, 3); k.s_lshl_b32(nb, sT[0], 2); k.s_add_u32(nb, nb, sW)
        va = V(16)
        k.v_and_b32(va, 31, vLane); k.v_lshlrev_b32(va, 10, va)
        k.v_lshrrev_b32(vTmp, 5, vLane); k.v_lshlrev_b32(vTmp, 3, vTmp); k.v_add_u32(va, va, vTmp)
        k.s_lshl_b32(sT[0], mb, 15); k.s_lshl_b32(sT[1], nb, 6); k.s_add_u32(sT[0], sT[0], sT[1])
        for q in range(4):
            k.buffer_load_dwordx2(xr[2*q:2*q+2], va, sXR, sT[0], mods=f"offen offset:{16*q}" if q else "offen")
        u = sI; j = sJ
        b0 = sA[2]; b0h = sA[3]; b1 = sA[4]; b1h = sA[5]; pitch = sA[6]; col0 = sA[7]; krow = sA[8]; dst = sA[9]; ext = sA[10]; ccm = sA[11]; nf = sA[12]
        t0, t1, t2 = sT[0], sT[1], sT[2]
        lA = k.label_name("uA"); lB = k.label_name("uB"); lC = k.label_name("uC"); lD = k.label_name("uD"); lE = k.label_name("uE")
        k.s_mov_b32(ccm, 31); k.s_mov_b32(nf, 8); k.s_mov_b32(krow, 0); k.s_mov_b32(ext, 0)
        k.s_cmp_lt_u32(u, 3); k.s_cbranch_scc1(lA)
        k.s_cmp_lt_u32(u, 10); k.s_cbranch_scc1(lB)
        k.s_cmp_lt_u32(u, 12); k.s_cbranch_scc1(lC)
        k.s_mov_b32(b0, sP[12]); k.s_mov_b32(b0h, sP[13]); k.s_mov_b32(pitch, 1024)
        k.s_lshl_b32(col0, j, 5); k.s_sub_u32(t0, u, 12); k.s_mul_i32(krow, t0, 448)
        k.s_mul_i32(dst, j, 112*KB); k.s_mul_i32(t0, t0, 28*KB); k.s_add_u32(dst, dst, t0); k.s_add_u32(dst, dst, W2)
        k.s_mov_b32(nf, 7)
        k.s_mov_b32(b1, b0); k.s_mov_b32(b1h, b0h)
        k.s_branch(lE)
        k.label(lA)
        k.s_mov_b32(b0, sP[2]); k.s_mov_b32(b0h, sP[3]); k.s_mov_b32(pitch, 3072)
        k.s_lshl_b32(col0, u, 9); k.s_lshl_b32(t0, j, 5); k.s_add_u32(col0, col0, t0)
        k.s_mul_i32(t0, j, 3); k.s_add_u32(t0, t0, u); k.s_lshl_b32(dst, t0, 15); k.s_add_u32(dst, dst, WQ)
        k.s_lshl_b32(t0, j, 2); k.s_add_u32(t0, t0, u); k.s_lshl_b32(ext, t0, 10); k.s_add_u32(ext, ext, WQE)
        k.s_mov_b32(b1, b0); k.s_mov_b32(b1h, b0h)
        k.s_branch(lE)
        k.label(lB)
        k.s_mov_b32(b0, sP[8]); k.s_mov_b32(b0h, sP[9]); k.s_mov_b32(b1, sP[10]); k.s_mov_b32(b1h, sP[11]); k.s_mov_b32(pitch, 3584)
        k.s_sub_u32(t1, u, 3); k.s_mul_i32(t0, j, 7); k.s_add_u32(t0, t0, t1)
        k.s_lshl_b32(col0, t0, 4)
        k.s_lshl_b32(dst, t0, 15); k.s_add_u32(dst, dst, W13)
        k.s_lshl_b32(t0, j, 3); k.s_add_u32(t0, t0, t1); k.s_lshl_b32(ext, t0, 10); k.s_add_u32(ext, ext, W13E)
        k.s_mov_b32(ccm, 15)
        k.s_branch(lE)
        k.label(lC)
        k.s_mov_b32(b0, sP[4]); k.s_mov_b32(b0h, sP[5]); k.s_mov_b32(pitch, 1024)
        k.s_sub_u32(t1, u, 10); k.s_and_b32(t0, j, 7); k.s_lshl_b32(t0, t0, 1); k.s_add_u32(t0, t0, t1); k.s_lshl_b32(col0, t0, 5)
        k.s_lshl_b32(t0, j, 1); k.s_add_u32(t0, t0, t1); k.s_lshl_b32(dst, t0, 15); k.s_add_u32(dst, dst, WO)
        k.s_mov_b32(b1, b0); k.s_mov_b32(b1h, b0h)
        k.label(lE)
        k.s_mul_i32(t0, sW, nf); k.s_lshl_b32(t1, t0, 4); k.s_add_u32(krow, krow, t1)
        k.s_lshl_b32(t0, t0, 10); k.s_add_u32(dst, dst, t0)
        ad = V(18, 2); c = V(20); cc = V(21)
        k.v_and_b32(c, 31, vLane)
        k.v_and_b32(cc, ccm, c)
        k.v_add_u32(cc, col0, cc); k.v_lshlrev_b32(cc, 1, cc)
        k.v_lshrrev_b32(vTmp, 5, vLane); k.v_lshlrev_b32(vTmp, 2, vTmp); k.v_add_u32(vTmp, krow, vTmp)
        k.v_mul_lo_u32(vTmp, vTmp, pitch); k.v_add_u32(cc, cc, vTmp)
        k.v_mov_b32(ad[0], b0); k.v_mov_b32(ad[1], b0h)
        k.v_mov_b32(vTmp, b1); k.v_mov_b32(vTmp2, b1h)
        k.v_cndmask_b32(ad[0], ad[0], vTmp, sUP16); k.v_cndmask_b32(ad[1], ad[1], vTmp2, sUP16)
        o64 = V(22, 2)
        k.v_mov_b32(o64[1], 0); k.v_mov_b32(o64[0], cc)
        k.v_lshl_add_u64(ad, o64, 0, ad)
        p1 = S(80, 2) if False else R("s", 94, 2); p5 = R("s", 96, 2)
        k.s_mov_b32(p1[0], pitch); k.s_mov_b32(p1[1], 0); k.s_mul_i32(p5[0], pitch, 5); k.s_mov_b32(p5[1], 0)
        U = V(24, 32); UR = V(100, 64)
        def frag(f):
            for j8 in range(8):
                k.emit("global_load_ushort", UR[8*f + j8], ad, "off", tag="u")
                if not (f == 7 and j8 == 7):
                    k.v_lshl_add_u64(ad, ad, 0, p5 if (j8 & 3) == 3 else p1)
        def pack(f):
            for d in range(4): k.v_lshl_or_b32(U[4*f + d], UR[8*f + 2*d + 1], 16, UR[8*f + 2*d])
        for f in range(7): frag(f)
        with k.when("nf", {8}, lambda: k.s_cmp_eq_u32(nf, 8), "s_cbranch_scc0"):
            frag(7)
        f = V(56, 16); tmp = V(72, 16); ms = V(88, 2)
        self.unpack(xr, f)
        k.s_lshl_b32(sT[0], mb, 15); k.s_lshl_b32(sT[1], nb, 11); k.s_add_u32(sT[0], sT[0], sT[1]); k.s_add_u32(sT[0], sT[0], XB)
        k.s_mov_b32(sT[3], 0)
        self.s_stat_off(sT[1], sT[3], mb, nb, sT[2], None)
        self.store_x_and_stats(xr, f, tmp, sT[0], sT[1], ms)
        for fi in range(7):
            pack(fi)
            k.buffer_store_dwordx4(U[4*fi:4*fi+4], vL0, sWS, dst, mods=f"offen offset:{(fi%4)*KB} sc1" if fi % 4 else "offen sc1", tag="st")
            if fi == 3: k.s_add_u32(dst, dst, 4*KB)
        with k.when("nf", {8}, lambda: k.s_cmp_eq_u32(nf, 8), "s_cbranch_scc0"):
            pack(7)
            k.buffer_store_dwordx4(U[28:32], vL0, sWS, dst, mods=f"offen offset:{3*KB} sc1", tag="st")
        with k.when("ext", {True}, lambda: k.s_cmp_lg_u32(ext, 0), "s_cbranch_scc0"):
            acc = V(56, 2); t = V(58, 2)
            k.v_mov_b32(acc[0], 0); k.v_mov_b32(acc[1], 0)
            for i in range(32):
                k.v_lshlrev_b32(t[0], 16, U[i]); k.v_and_b32(t[1], 0xffff0000, U[i])
                k.v_pk_add_f32(acc, acc, t)
            k.v_add_f32(acc[0], acc[0], acc[1])
            self.cross_half_add(acc[0], t[0])
            k.v_and_b32(t[0], 31, vLane); k.v_lshlrev_b32(t[0], 2, t[0])
            k.s_lshl_b32(sT[0], sW, 7); k.s_add_u32(sT[0], sT[0], L_MISC)
            k.v_add_u32(t[1], sT[0], t[0])
            k.ds_write_b32(t[1], acc[0])
            k.s_waitcnt(mods="lgkmcnt(0)")
            k.s_barrier()
            with self.if_wave({0}):
                k.v_add_u32(t[0], L_MISC, t[0])
                r4 = V(60, 4)
                for w in range(4): k.ds_read_b32(r4[w], t[0], mods=f"offset:{128*w}" if w else "")
                k.v_add_f32(r4[0], r4[0], r4[1]); k.v_add_f32(r4[2], r4[2], r4[3]); k.v_add_f32(r4[0], r4[0], r4[2])
                e = V(64, 4)
                k.v_cvt_pk_bf16_f32(e[0], r4[0], r4[0])
                k.v_lshlrev_b32(r4[1], 16, e[0])
                k.v_sub_f32(r4[1], r4[0], r4[1])
                k.v_cvt_pk_bf16_f32(e[0], r4[0], r4[1])
                k.v_and_b32(e[1], 0xffff, e[0])
                k.v_mov_b32(e[2], 0); k.v_mov_b32(e[3], 0)
                k.v_cndmask_b32(e[0], e[0], e[2], sHI); k.v_cndmask_b32(e[1], e[1], e[2], sHI)
                k.buffer_store_dwordx4(e, vL0, sWS, ext, mods="offen sc1", tag="st")
        k.s_waitcnt(mods="vmcnt(0) lgkmcnt(0)")
        k.s_barrier()
        with self.if_wave({0}):
            lp = k.label_name("ip"); dn = k.label_name("ig")
            k.s_mov_b64(exec_, 1)
            k.s_mov_b32(sSpin, 0)
            k.label(lp)
            k.buffer_load_dword(vTmp, "off", sDBG, 0, mods="sc1")
            k.s_add_u32(sSpin, sSpin, 1)
            k.s_waitcnt(mods="vmcnt(0)")
            k.v_readfirstlane_b32(sT[10], vTmp)
            k.s_cmp_lg_u32(sT[10], 0)
            k.s_cbranch_scc1(dn)
            k.s_cmp_lt_u32(sSpin, 0x40000)
            k.s_cbranch_scc1(lp)
            k.s_mov_b32(sErr, 1)
            k.label(dn)
            k.s_lshl_b32(sT[0], sI, 8); k.s_add_u32(sT[0], sT[0], C_H0R*256)
            k.buffer_atomic_add(vOne, "off", sWS, sT[0])
            with k.when("uA", {True}, lambda: k.s_cmp_lt_u32(sI, 3), "s_cbranch_scc0"):
                k.s_lshl_b32(sT[0], sJ, 8); k.s_add_u32(sT[0], sT[0], C_H0C*256)
                k.buffer_atomic_add(vOne, "off", sWS, sT[0])
            k.s_mov_b64(exec_, -1)
            k.s_lshl_b32(sCnt, sI, 8); k.s_add_u32(sCnt, sCnt, C_H0R*256)
            self.poll(sCnt, 16)
            k.s_lshl_b32(sCnt, sJ, 8); k.s_add_u32(sCnt, sCnt, C_H0C*256)
            self.poll(sCnt, 3)
        k.s_barrier()

    def weave(self, slots, fillers, start=0, per=3):
        k = self.k
        fi = 0
        for n, s in enumerate(slots):
            k.put(s)
            if n >= start:
                c = per(n) if callable(per) else per
                take = fillers[fi:fi+c]; fi += len(take)
                k.put(take)
        k.put(fillers[fi:])

    def ln_stats(self, st, mean, rstd, xext, t):
        k = self.k
        k.v_pk_add_f32(t[0:2], st[0:2], st[2:4]); k.v_pk_add_f32(t[2:4], st[4:6], st[6:8])
        k.v_pk_add_f32(t[0:2], t[0:2], t[2:4])
        k.v_pk_add_f32(t[2:4], st[8:10], st[10:12]); k.v_pk_add_f32(t[0:2], t[0:2], t[2:4])
        k.v_pk_add_f32(t[2:4], st[12:14], st[14:16]); k.v_pk_add_f32(t[0:2], t[0:2], t[2:4])
        self.cross_half_add(t[0], t[2])
        k.v_mul_f32(mean, 1.0/16, t[0])
        k.v_mov_b32(t[2], 0)
        for b in range(8):
            k.v_sub_f32(t[3], st[2*b], mean)
            k.v_fmac_f32(t[2], t[3], t[3])
        k.v_mov_b32(t[3], 32.0)
        k.v_fmac_f32(t[1], t[2], t[3])
        self.cross_half_add(t[1], t[2])
        k.v_mov_b32(t[2], 1e-5)
        k.v_fmac_f32(t[2], 1.0/512, t[1])
        k.v_rsq_f32(rstd, t[2])
        k.v_sub_f32(t[0], 0, mean)
        k.v_cvt_pk_bf16_f32(xext[0], t[0], t[0])
        k.v_lshlrev_b32(t[1], 16, xext[0])
        k.v_sub_f32(t[1], t[0], t[1])
        k.v_mov_b32(xext[2], 0); k.v_mov_b32(xext[3], 0)
        k.v_cvt_pk_bf16_f32(xext[1], t[1], xext[2])
        k.v_cndmask_b32(xext[0], xext[0], xext[2], sHI)
        k.v_cndmask_b32(xext[1], xext[1], xext[2], sHI)

    def load_x(self, n_s, st):
        k = self.k
        mb = sT[0]
        k.s_lshl_b32(mb, sI, 2); k.s_add_u32(mb, mb, sW)
        k.s_lshl_b32(sT[1], n_s, 18); k.s_lshl_b32(sT[2], mb, 12); k.s_add_u32(sT[1], sT[1], sT[2]); k.s_add_u32(sT[1], sT[1], SB)
        for c in range(4):
            k.buffer_load_dwordx4(st[4*c:4*c+4], vL0, sWS, sT[1], mods=f"offen offset:{c*KB} sc1" if c else "offen sc1")
        k.s_lshl_b32(sT[1], n_s, 21); k.s_lshl_b32(sT[2], mb, 15); k.s_add_u32(sT[1], sT[1], sT[2]); k.s_add_u32(sT[1], sT[1], XB)
        self.frag_loads(lambda t: A(4*t, 4), 32, sT[1], tag="x")

    def dma_wq(self):
        k = self.k
        with self.if_wave({1,2,3}):
            k.s_sub_u32(sT[0], sW, 1)
            k.s_mul_i32(sT[1], sJ, 3); k.s_add_u32(sT[1], sT[1], sT[0]); k.s_lshl_b32(sT[1], sT[1], 15); k.s_add_u32(sT[1], sT[1], WQ)
            k.s_lshl_b32(sT[2], sT[0], 15)
            self.dma(32, sT[1], sT[2], "dmaq")
            k.s_lshl_b32(sT[1], sJ, 2); k.s_add_u32(sT[1], sT[1], sT[0]); k.s_lshl_b32(sT[1], sT[1], 10); k.s_add_u32(sT[1], sT[1], WQE)
            k.s_lshl_b32(sT[2], sT[0], 10); k.s_add_u32(sT[2], sT[2], L_WQE)
            self.dma(1, sT[1], sT[2], "dmaq")

    def lds_addr(self, off):
        if off < 0x10000: return vL0, off
        if off < 0x20000: return vL1, off - 0x10000
        return vL2, off - 0x20000
    def ds_frag(self, dst, off):
        b, im = self.lds_addr(off)
        self.k.ds_read_b128(dst, b, mods=f"offset:{im}" if im else "")

    LOG2E = 1.4426950408889634
    def phi(self, src, rs, rc, dst, t, cE):
        k = self.k
        n = src.n
        for i in range(n): k.v_mul_f32(t[i], src[i], rc(i))
        for i in range(n): k.v_min_f32(t[i], 0, t[i])
        for i in range(n): k.v_exp_f32(t[i], t[i])
        for i in range(n): k.v_fma_f32(dst[i], src[i], rs(i), cE)
        for i in range(n): k.v_max_f32(dst[i], cE, dst[i])
        for i in range(n): k.v_add_f32(dst[i], dst[i], t[i])

    def p1(self):
        k = self.k
        st = V(8, 16); accK = V(24, 16); accV = V(40, 16); accQ = V(56, 16)
        wb = [V(72 + 4*i, 4) for i in range(6)]
        xext = V(96, 4); rD = V(100, 16); rcD = V(116, 16); tmp = V(132, 16); pk = V(148, 16)
        mean = V(164); rstd = V(165); t4 = V(166, 4); cE = V(170); rc = V(171)
        pkF = V(172, 8); vF = V(180, 8); ones = V(188, 4); kvD = V(192, 16); zD = V(208, 16)
        self.pqF = pqF = V(224, 8)
        with self.if_layer(0):
            self.dma_wq()
        k.s_lshl_b32(sT[5], sL, 1)
        self.load_x(sT[5], st)
        k.waittag("dmaq")
        k.s_barrier()
        with k.capture() as fl:
            self.ln_stats(st, mean, rstd, xext, t4)
            k.s_lshl_b32(sT[0], sW, 7); k.s_add_u32(sT[0], sT[0], L_MISC)
            k.v_lshrrev_b32(t4[0], 2, vM16); k.v_add_u32(t4[0], sT[0], t4[0])
            k.ds_write_b32(t4[0], rstd)
            k.v_lshrrev_b32(t4[1], 5, vLane); k.v_lshlrev_b32(t4[1], 4, t4[1]); k.v_add_u32(t4[1], sT[0], t4[1])
            for g in range(4): k.ds_read_b128(rD[4*g:4*g+4], t4[1], mods=f"offset:{32*g}" if g else "")
            k.v_mul_f32(rc, self.LOG2E, rstd)
            for i in range(16): k.v_mul_f32(rcD[i], self.LOG2E, rD[i])
            k.v_mov_b32(cE, 1e-6)
            for i in range(4): k.v_mov_b32(ones[i], 0x3f803f80)
        uses = []
        for t in range(32):
            uses.append((accK, t, L_SLOT*1 + t*KB)); uses.append((accV, t, L_SLOT*2 + t*KB))
        uses.append((accK, 32, L_WQE + 1*KB)); uses.append((accV, 32, L_WQE + 2*KB))
        D = 4
        slots = []
        pre = []
        with k.capture() as pre:
            for u in range(D): self.ds_frag(wb[u % 6], uses[u][2])
        k.put(pre)
        for u, (acc, t, off) in enumerate(uses):
            with k.capture() as s:
                xa = A(4*t, 4) if t < 32 else xext
                k.v_mfma_f32_32x32x16_bf16(acc, xa, wb[u % 6], 0 if t == 0 else acc)
                if u + D < len(uses): self.ds_frag(wb[(u + D) % 6], uses[u + D][2])
            slots.append(s)
        self.weave(slots, fl, start=6, per=2)
        self.phi(accK, lambda i: rD[i], lambda i: rcD[i], pk, tmp, cE)
        for i in range(16): k.v_mul_f32(accV[i], accV[i], rD[i])
        for i in range(8): k.v_cvt_pk_bf16_f32(pkF[i], pk[2*i], pk[2*i+1])
        for i in range(8): k.v_cvt_pk_bf16_f32(vF[i], accV[2*i], accV[2*i+1])
        k.v_mfma_f32_32x32x16_bf16(kvD, pkF[0:4], vF[0:4], 0)
        k.v_mfma_f32_32x32x16_bf16(zD, ones, pkF[0:4], 0)
        k.v_mfma_f32_32x32x16_bf16(kvD, pkF[4:8], vF[4:8], kvD)
        k.v_mfma_f32_32x32x16_bf16(zD, ones, pkF[4:8], zD)
        usesq = [(t, t*KB) for t in range(32)] + [(32, L_WQE)]
        for u in range(D): self.ds_frag(wb[u % 6], usesq[u][1])
        sel = tmp[0:8]
        for i in range(8): k.v_cndmask_b32(sel[i], kvD[i], kvD[8+i], sUP16)
        va = t4[0]; vz = t4[1]
        k.s_mul_i32(sT[0], sW, 2304); k.s_add_u32(sT[0], sT[0], L_KVS)
        k.v_add_u32(va, sT[0], vL0)
        k.ds_write_b128(va, sel[0:4]); k.ds_write_b128(va, sel[4:8], mods="offset:1024")
        k.v_lshrrev_b32(vz, 2, vM16); k.v_add_u32(vz, sT[0], vz)
        k.ds_write_b32(vz, zD[0], mods="offset:2048")
        k.s_waitcnt(mods="lgkmcnt(0)")
        k.s_barrier()
        slot = sA[0]
        k.s_lshl_b32(slot, sJ, 4); k.s_add_u32(slot, slot, sI); k.s_lshl_b32(slot, slot, 12)
        k.s_lshl_b32(sT[0], sL, 20); k.s_add_u32(slot, slot, sT[0]); k.s_add_u32(slot, slot, KVP)
        with self.if_wave({0,1}):
            k.s_lshl_b32(sT[0], sW, 10); k.s_add_u32(sT[1], sT[0], L_KVS)
            k.v_add_u32(va, sT[1], vL0)
            r = tmp
            for w in range(4): k.ds_read_b128(r[4*w:4*w+4], va, mods=f"offset:{2304*w}" if w else "")
            k.v_pk_add_f32(r[0:2], r[0:2], r[4:6]); k.v_pk_add_f32(r[2:4], r[2:4], r[6:8])
            k.v_pk_add_f32(r[8:10], r[8:10], r[12:14]); k.v_pk_add_f32(r[10:12], r[10:12], r[14:16])
            k.v_pk_add_f32(r[0:2], r[0:2], r[8:10]); k.v_pk_add_f32(r[2:4], r[2:4], r[10:12])
            k.s_add_u32(sT[1], slot, sT[0])
            k.buffer_store_dwordx4(r[0:4], vL0, sWS, sT[1], mods="offen sc1", tag="st")
        with self.if_wave({2}):
            k.v_lshrrev_b32(vz, 2, vM16); k.v_add_u32(va, L_KVS, vz)
            r = tmp
            for w in range(4): k.ds_read_b32(r[w], va, mods=f"offset:{2304*w + 2048}")
            k.v_add_f32(r[0], r[0], r[1]); k.v_add_f32(r[2], r[2], r[3]); k.v_add_f32(r[0], r[0], r[2])
            k.buffer_store_dword(r[0], vz, sWS, slot, mods="offen offset:2048 sc1", tag="st")
        self.cnt_off(sCnt, C_COL, sJ)
        self.arrive(sCnt)
        self.stamp()
        for nl in range(2):
            k.s_and_b32(sT[0], sW, 1); k.s_xor_b32(sT[0], sT[0], nl)
            k.s_lshl_b32(sT[1], sJ, 1); k.s_add_u32(sT[1], sT[1], sT[0]); k.s_lshl_b32(sT[1], sT[1], 15)
            k.s_lshl_b32(sT[2], sW, 13); k.s_add_u32(sT[1], sT[1], sT[2]); k.s_add_u32(sT[1], sT[1], WO)
            self.frag_loads(lambda t: A(128 + 4*(nl*8 + t), 4), 8, sT[1], tag="wo")
        for u, (t, off) in enumerate(usesq):
            xa = A(4*t, 4) if t < 32 else xext
            k.v_mfma_f32_32x32x16_bf16(accQ, wb[u % 6], xa, 0 if t == 0 else accQ)
            if u + D < len(usesq): self.ds_frag(wb[(u + D) % 6], usesq[u + D][1])
        self.phi(accQ, lambda i: rstd, lambda i: rc, pk, tmp, cE)
        for i in range(8): k.v_cvt_pk_bf16_f32(pqF[i], pk[2*i], pk[2*i+1])

    def attn_o(self):
        k = self.k
        pqF = self.pqF
        self.cnt_off(sCnt, C_COL, sJ)
        self.wait(sCnt, 16)
        self.stamp()
        P = V(8, 32); z = V(40, 2); t = V(44, 8); kvA = [V(56, 4), V(60, 4)]; acc = V(64, 32); ad = V(96, 4); D_ = [V(100, 16), V(116, 16)]; o = V(132, 8); of = V(140, 4)
        base = sA[0]
        k.s_lshl_b32(base, sJ, 4); k.s_lshl_b32(sT[0], sW, 2); k.s_add_u32(base, base, sT[0]); k.s_lshl_b32(base, base, 12)
        k.s_lshl_b32(sT[0], sL, 20); k.s_add_u32(base, base, sT[0]); k.s_add_u32(base, base, KVP)
        k.s_mov_b32(sT[1], base)
        for s in range(4):
            for p in range(2):
                k.buffer_load_dwordx4(P[8*s + 4*p: 8*s + 4*p + 4], vL0, sWS, sT[1], mods=f"offen offset:{p*KB} sc1" if p else "offen sc1")
            if s < 3: k.s_add_u32(sT[1], sT[1], 4096)
        vz = t[0]
        k.v_lshrrev_b32(vz, 2, vM16); k.v_lshrrev_b32(t[1], 5, vLane); k.v_lshlrev_b32(t[1], 12, t[1]); k.v_add_u32(vz, vz, t[1])
        k.buffer_load_dword(z[0], vz, sWS, base, mods="offen offset:2048 sc1")
        k.s_add_u32(sT[1], base, 8192)
        k.buffer_load_dword(z[1], vz, sWS, sT[1], mods="offen offset:2048 sc1")
        row = t[2]; hf = t[3]
        k.v_and_b32(row, 31, vLane); k.v_lshrrev_b32(hf, 5, vLane)
        k.v_and_b32(t[4], 0x1b, row); k.v_cmp_eq_u32(vcc, 16, t[4])
        k.s_mov_b64(sLO16R, vcc)
        k.v_cmp_gt_u32(vcc, 16, row)
        for h in range(2):
            for p in range(2):
                a_ = ad[2*h + p]
                k.v_lshlrev_b32(t[5], 4, hf); k.v_add_u32(t[5], 2048 + 64*h + 32*p, t[5])
                k.v_mov_b32(t[6], 2176)
                k.v_cndmask_b32(t[5], t[6], t[5], sLO16R)
                k.v_lshlrev_b32(t[6], 5, hf); k.v_add_u32(t[6], t[6], row); k.v_lshlrev_b32(t[6], 4, t[6]); k.v_add_u32(t[6], p*1024 + 256*h, t[6])
                k.v_cndmask_b32(a_, t[5], t[6], vcc)
                k.v_add_u32(a_, L_KVS, a_)
        for s in range(1, 4):
            for q in range(4): k.v_pk_add_f32(P[2*q:2*q+2], P[2*q:2*q+2], P[8*s + 2*q: 8*s + 2*q + 2])
        k.v_add_f32(z[0], z[0], z[1])
        self.cross_half_add(z[0], z[1])
        va = t[5]; vw = t[6]
        k.s_mul_i32(sT[0], sW, 2304); k.s_add_u32(sT[0], sT[0], L_KVS)
        k.v_add_u32(va, sT[0], vL0)
        k.ds_write_b128(va, P[0:4]); k.ds_write_b128(va, P[4:8], mods="offset:1024")
        k.v_lshrrev_b32(vw, 2, vM16); k.v_add_u32(vw, sT[0], vw)
        k.ds_write_b32(vw, z[0], mods="offset:2048")
        k.v_mov_b32(z[1], 0)
        k.ds_write_b32(vw, z[1], mods="offset:2176")
        k.s_waitcnt(mods="lgkmcnt(0)")
        k.s_barrier()
        for h in range(2):
            for p in range(2):
                for w in range(4):
                    k.ds_read_b128(acc[16*p + 4*w: 16*p + 4*w + 4], ad[2*h + p], mods=f"offset:{2304*w}" if w else "")
            for p in range(2):
                b = 16*p
                k.v_pk_add_f32(acc[b:b+2], acc[b:b+2], acc[b+4:b+6]); k.v_pk_add_f32(acc[b+2:b+4], acc[b+2:b+4], acc[b+6:b+8])
                k.v_pk_add_f32(acc[b+8:b+10], acc[b+8:b+10], acc[b+12:b+14]); k.v_pk_add_f32(acc[b+10:b+12], acc[b+10:b+12], acc[b+14:b+16])
                k.v_pk_add_f32(acc[b:b+2], acc[b:b+2], acc[b+8:b+10]); k.v_pk_add_f32(acc[b+2:b+4], acc[b+2:b+4], acc[b+10:b+12])
                k.v_cvt_pk_bf16_f32(kvA[h][2*p], acc[b], acc[b+1]); k.v_cvt_pk_bf16_f32(kvA[h][2*p+1], acc[b+2], acc[b+3])
        for h in range(2):
            k.v_mfma_f32_32x32x16_bf16(D_[h], kvA[h], pqF[4*h:4*h+4], 0)
        ob = sA[1]
        k.s_lshl_b32(ob, sI, 2); k.s_add_u32(ob, ob, sW); k.s_lshl_b32(ob, ob, 5); k.s_lshl_b32(sT[0], sJ, 1); k.s_add_u32(ob, ob, sT[0]); k.s_lshl_b32(ob, ob, 10)
        k.s_lshl_b32(sT[0], sL, 21); k.s_add_u32(ob, ob, sT[0]); k.s_add_u32(ob, ob, OB)
        for h in range(2):
            k.v_add_f32(t[0], 1e-6, D_[h][8])
            k.v_rcp_f32(t[0], t[0])
            for i in range(8): k.v_mul_f32(o[i], D_[h][i], t[0])
            for i in range(4): k.v_cvt_pk_bf16_f32(of[i], o[2*i], o[2*i+1])
            k.buffer_store_dwordx4(of, vL0, sWS, ob, mods=f"offen offset:{h*KB} sc1" if h else "offen sc1", tag="st")
        self.cnt_off(sCnt, C_RO, sI)
        self.arrive(sCnt)
        self.stamp()
        with self.if_wave({1,2,3}):
            k.s_sub_u32(sT[0], sW, 1)
            k.s_mul_i32(sT[1], sJ, 7); k.s_add_u32(sT[1], sT[1], sT[0]); k.s_lshl_b32(sT[1], sT[1], 15); k.s_add_u32(sT[1], sT[1], W13)
            k.s_lshl_b32(sT[2], sT[0], 15)
            self.dma(32, sT[1], sT[2], "dma13a")
        with self.if_wave({1}):
            k.s_lshl_b32(sT[1], sJ, 13); k.s_add_u32(sT[1], sT[1], W13E)
            k.s_mov_b32(sT[2], L_W13E)
            self.dma(7, sT[1], sT[2], "dma13a")
        self.wait(sCnt, 16)
        self.stamp()

    def tile_ids(self):
        k = self.k
        k.s_lshr_b32(sT[0], sJ, 3); k.s_lshl_b32(sT[0], sT[0], 1); k.s_lshl_b32(sT[1], sI, 2); k.s_add_u32(sT[0], sT[0], sT[1])
        k.s_lshr_b32(sT[1], sW, 1); k.s_add_u32(sA[8], sT[0], sT[1]); k.s_xor_b32(sT[1], sT[1], 1); k.s_add_u32(sA[9], sT[0], sT[1])
        k.s_and_b32(sT[0], sJ, 7); k.s_lshl_b32(sT[0], sT[0], 1); k.s_and_b32(sT[1], sW, 1)
        k.s_add_u32(sA[10], sT[0], sT[1]); k.s_xor_b32(sT[1], sT[1], 1); k.s_add_u32(sA[11], sT[0], sT[1])
    def res_loads(self, n_s, res):
        k = self.k
        k.s_lshl_b32(sT[0], n_s, 21); k.s_lshl_b32(sT[1], sA[8], 15); k.s_add_u32(sT[0], sT[0], sT[1])
        k.s_lshl_b32(sT[1], sA[10], 11); k.s_add_u32(sT[0], sT[0], sT[1]); k.s_add_u32(sT[0], sT[0], XB)
        k.buffer_load_dwordx4(res[0:4], vL0, sWS, sT[0], mods="offen sc1")
        k.buffer_load_dwordx4(res[4:8], vL0, sWS, sT[0], mods="offen offset:1024 sc1")
    def finish64(self, acc, res, nout_s, final_possible):
        k = self.k
        vw = V(200, 3); vr = V(203); rb = V(204, 48-0) if False else None
        for kk in range(1, 4):
            k.s_xor_b32(sT[0], sW, kk); k.s_mul_i32(sT[0], sT[0], 3); k.s_add_u32(sT[0], sT[0], kk-1); k.s_lshl_b32(sT[0], sT[0], 12); k.s_add_u32(sT[0], sT[0], L_RED)
            k.v_add_u32(vw[kk-1], sT[0], vL0)
        k.s_mul_i32(sT[0], sW, 3*4096); k.s_add_u32(sT[0], sT[0], L_RED)
        k.v_add_u32(vr, sT[0], vL0)
        for kk in range(1, 4):
            for q in range(4): k.ds_write_b128(vw[kk-1], acc[kk][4*q:4*q+4], mods=f"offset:{q*KB}" if q else "")
        k.s_waitcnt(mods="lgkmcnt(0)")
        k.s_barrier()
        for s in range(3):
            for q in range(4): k.ds_read_b128(acc[s+1][4*q:4*q+4], vr, mods=f"offset:{s*4096 + q*KB}" if (s or q) else "")
        f = acc[0]
        r16 = V(208, 16); tmp = V(224, 16); pk = V(240, 8); ms = V(248, 2)
        self.unpack(res, r16)
        for i in range(8): k.v_pk_add_f32(f[2*i:2*i+2], f[2*i:2*i+2], r16[2*i:2*i+2])
        for s in range(3):
            for i in range(8): k.v_pk_add_f32(f[2*i:2*i+2], f[2*i:2*i+2], acc[s+1][2*i:2*i+2])
        for i in range(8): k.v_cvt_pk_bf16_f32(pk[i], f[2*i], f[2*i+1])
        def inter():
            k.s_lshl_b32(sT[0], nout_s, 21); k.s_lshl_b32(sT[1], sA[8], 15); k.s_add_u32(sT[0], sT[0], sT[1])
            k.s_lshl_b32(sT[1], sA[10], 11); k.s_add_u32(sT[0], sT[0], sT[1]); k.s_add_u32(sT[0], sT[0], XB)
            self.s_stat_off(sT[1], nout_s, sA[8], sA[10], sT[2], None)
            self.unpack(pk, f)
            self.store_x_and_stats(pk, f, tmp, sT[0], sT[1], ms)
        if not final_possible:
            inter()
        else:
            with self.if_layer(0): inter()
            with self.if_layer(1):
                k.v_lshrrev_b32(tmp[0], 4, vM16); k.v_lshlrev_b32(tmp[0], 10, tmp[0])
                k.v_lshrrev_b32(tmp[1], 5, vLane); k.v_lshlrev_b32(tmp[1], 3, tmp[1]); k.v_add_u32(tmp[0], tmp[0], tmp[1])
                k.s_lshl_b32(sT[0], sA[8], 15); k.s_lshl_b32(sT[1], sA[10], 6); k.s_add_u32(sT[0], sT[0], sT[1])
                for g in range(4):
                    k.buffer_store_dwordx2(pk[2*g:2*g+2], tmp[0], sOUT, sT[0], mods=f"offen offset:{16*g}" if g else "offen")

    def p2b(self):
        k = self.k
        acc = [V(8 + 16*i, 16) for i in range(4)]; res = V(72, 8)
        self.tile_ids()
        h0 = sA[0]; h1 = sA[1]
        for hs, mb in ((h0, sA[8]), (h1, sA[9])):
            k.s_lshl_b32(hs, mb, 15); k.s_lshl_b32(sT[0], sW, 13); k.s_add_u32(hs, hs, sT[0])
            k.s_lshl_b32(sT[0], sL, 21); k.s_add_u32(hs, hs, sT[0]); k.s_add_u32(hs, hs, OB)
        for t in range(8):
            for ml, hs in enumerate((h0, h1)):
                im = (t % 4)*KB
                k.buffer_load_dwordx4(A(4*(ml*8 + t), 4), vL0, sWS, hs, mods=f"offen offset:{im} sc1" if im else "offen sc1")
            if t == 3:
                k.s_add_u32(h0, h0, 4*KB); k.s_add_u32(h1, h1, 4*KB)
        k.s_lshl_b32(sT[5], sL, 1)
        self.res_loads(sT[5], res)
        for t in range(8):
            for kk in range(4):
                ml, nl = kk >> 1, kk & 1
                k.v_mfma_f32_32x32x16_bf16(acc[kk], A(128 + 4*(nl*8 + t), 4), A(4*(ml*8 + t), 4), 0 if t == 0 else acc[kk])
        k.s_lshl_b32(sT[5], sL, 1); k.s_add_u32(sA[2], sT[5], 1)
        self.finish64(acc, res, sA[2], False)
        self.cnt_off(sCnt, C_RX1, sI)
        self.arrive(sCnt)
        self.stamp()
        with self.if_wave({1,2,3}):
            self.w2a_loads()
        self.wait(sCnt, 16)
        self.stamp()

    def w2_base(self, dst, nl):
        k = self.k
        k.s_mul_i32(dst, sA[10 + nl], 112*KB); k.s_mul_i32(sT[0], sW, 28*KB); k.s_add_u32(dst, dst, sT[0]); k.s_add_u32(dst, dst, W2)
    def w2a_loads(self):
        k = self.k
        for nl in range(2):
            self.w2_base(sT[1], nl)
            for jj in range(4):
                for b in range(4):
                    k.buffer_load_dwordx4(A(128 + 4*(nl*16 + jj*4 + b), 4), vL0, sWS, sT[1], mods=f"offen offset:{b*KB} sc1" if b else "offen sc1", tag="w2a")
                if jj < 3: k.s_add_u32(sT[1], sT[1], 7*KB)

    def silu_epi(self, acc, b, c1, c2, t, hp, hs):
        k = self.k
        G = acc[0:8]; U = acc[8:16]
        for i in range(8): k.v_mul_f32(t[i], G[i], c1)
        for i in range(8): k.v_exp_f32(t[i], t[i])
        for i in range(8): k.v_mul_f32(U[i], G[i], U[i])
        for i in range(8): k.v_add_f32(t[i], 1.0, t[i])
        for i in range(8): k.v_rcp_f32(t[i], t[i])
        for i in range(8): k.v_mul_f32(U[i], U[i], c2)
        for i in range(8): k.v_mul_f32(U[i], U[i], t[i])
        for i in range(4): k.v_cvt_pk_bf16_f32(hp[i], U[2*i], U[2*i+1])
        grp, im = divmod(b, 4)
        if b == 4: k.s_add_u32(hs, hs, 4*KB)
        k.buffer_store_dwordx4(hp, vL0, sWS, hs, mods=f"offen offset:{im*KB} sc1" if im else "offen sc1", tag=f"hst{b}")

    def p3(self):
        k = self.k
        st = V(8, 16); acc = [V(24 + 16*i, 16) for i in range(3)]
        wb = [V(72 + 4*i, 4) for i in range(6)]
        xext = V(96, 4); mean = V(100); rstd = V(101); t4 = V(102, 4); c1 = V(106); c2 = V(107)
        et = V(108, 8); hp = [V(116, 4), V(120, 4)]
        k.s_lshl_b32(sT[5], sL, 1); k.s_add_u32(sT[5], sT[5], 1)
        self.load_x(sT[5], st)
        def dma_blk(b):
            k.s_mul_i32(sT[1], sJ, 7); k.s_add_u32(sT[1], sT[1], b); k.s_lshl_b32(sT[1], sT[1], 15)
            k.s_lshl_b32(sT[2], sW, 13); k.s_add_u32(sT[1], sT[1], sT[2]); k.s_add_u32(sT[1], sT[1], W13)
            k.s_add_u32(sT[2], sT[2], (b % 4)*L_SLOT)
            self.dma(8, sT[1], sT[2], f"dma13_{b}")
        dma_blk(3)
        with self.if_wave({0}):
            self.w2a_loads()
        hs = sA[3]
        k.s_lshl_b32(hs, sI, 2); k.s_add_u32(hs, hs, sW); k.s_mul_i32(hs, hs, 112*KB)
        k.s_mul_i32(sT[0], sJ, 7*KB); k.s_add_u32(hs, hs, sT[0]); k.s_mul_i32(sT[0], sL, 7*1024*KB); k.s_add_u32(hs, hs, sT[0]); k.s_add_u32(hs, hs, HB_)
        k.waittag("dma13a")
        with k.capture() as fl0:
            self.ln_stats(st, mean, rstd, xext, t4)
            k.v_mul_f32(c1, -self.LOG2E, rstd)
            k.v_mul_f32(c2, rstd, rstd)
        uses = []
        for t in range(32):
            uses.append((0, t)); uses.append((1, t))
        uses.append((0, 32)); uses.append((1, 32))
        for b in range(2, 7):
            for t in range(33): uses.append((b, t))
        def off(b, t): return (L_W13E + b*KB) if t == 32 else ((b % 4)*L_SLOT + t*KB)
        D = 4
        n0 = 66
        starts = {b: n0 + 33*(b-2) for b in range(2, 7)}
        for u in range(D): self.ds_frag(wb[u % 6], off(*uses[u]))
        epi = {}
        for b in range(7):
            with k.capture() as e: self.silu_epi(acc[b % 3], b, c1, c2, et, hp[b % 2], hs)
            epi[b] = e
        actions = {}
        def add_action(u, fn): actions.setdefault(u, []).append(fn)
        def bar(tags):
            def f():
                if tags: k.waittag(*tags)
                k.s_barrier()
            return f
        add_action(n0 - 1, lambda: (k.s_waitcnt(mods="lgkmcnt(%d)" % D) if False else None))
        add_action(n0 - 1, bar(None)); add_action(n0 - 1, lambda: dma_blk(4)); add_action(n0 - 1, lambda: dma_blk(5))
        add_action(starts[3] - D - 1, bar(["dma13_3"]))
        add_action(starts[4] - D - 1, bar(["dma13_4"])); add_action(starts[4] - D - 1, lambda: dma_blk(6))
        add_action(starts[5] - D - 1, bar(["dma13_5"]))
        def ha():
            k.waittag("dma13_6", "hst0", "hst1", "hst2", "hst3")
            k.s_barrier()
            self.cnt_off(sCnt, C_RHA, sI)
            with self.if_wave({0}):
                k.s_mov_b64(exec_, 1)
                k.buffer_atomic_add(vOne, "off", sWS, sCnt)
                k.s_mov_b64(exec_, -1)
        add_action(starts[6] - D - 1, ha)
        fillers = {}
        def segment(lo, hi, fill, start, per):
            slots = []
            for u in range(lo, hi):
                b, t = uses[u]
                with k.capture() as s:
                    xa = A(4*t, 4) if t < 32 else xext
                    k.v_mfma_f32_32x32x16_bf16(acc[b % 3], wb[u % 6], xa, 0 if t == 0 else acc[b % 3])
                    if u + D < len(uses): self.ds_frag(wb[(u + D) % 6], off(*uses[u + D]))
                    for fn in actions.get(u, []): fn()
                slots.append(s)
            self.weave(slots, fill, start=start, per=per)
        segment(0, n0, fl0, 6, 2)
        segment(starts[2], starts[3], epi[0] + epi[1], 1, 4)
        segment(starts[3], starts[4], epi[2], 1, 2)
        segment(starts[4], starts[5], epi[3], 1, 2)
        segment(starts[5], starts[6], epi[4], 1, 2)
        segment(starts[6], len(uses), epi[5], 1, 2)
        k.put(epi[6])
        self.cnt_off(sCnt, C_RHB, sI)
        self.arrive(sCnt)
        self.stamp()

    def p4(self):
        k = self.k
        acc = [V(8 + 16*i, 16) for i in range(4)]; res = V(72, 8)
        w2b = V(80, 96)
        self.tile_ids()
        h0 = sA[0]; h1 = sA[1]
        def hbase():
            for hs, mb in ((h0, sA[8]), (h1, sA[9])):
                k.s_mul_i32(hs, mb, 112*KB); k.s_mul_i32(sT[0], sW, 28*KB); k.s_add_u32(hs, hs, sT[0])
                k.s_mul_i32(sT[0], sL, 7*1024*KB); k.s_add_u32(hs, hs, sT[0]); k.s_add_u32(hs, hs, HB_)
        hbase()
        self.cnt_off(sCnt, C_RHA, sI)
        self.wait(sCnt, 16)
        self.stamp()
        for jj in range(4):
            for b in range(4):
                for ml, hs in enumerate((h0, h1)):
                    k.buffer_load_dwordx4(A(4*(ml*16 + jj*4 + b), 4), vL0, sWS, hs, mods=f"offen offset:{b*KB} sc1" if b else "offen sc1")
            if jj < 3:
                k.s_add_u32(h0, h0, 7*KB); k.s_add_u32(h1, h1, 7*KB)
        for nl in range(2):
            self.w2_base(sT[1], nl)
            k.s_add_u32(sT[1], sT[1], 4*KB)
            for jj in range(4):
                for b in range(3):
                    r = 4*(nl*12 + jj*3 + b)
                    k.buffer_load_dwordx4(w2b[r:r+4], vL0, sWS, sT[1], mods=f"offen offset:{b*KB} sc1" if b else "offen sc1")
                if jj < 3: k.s_add_u32(sT[1], sT[1], 7*KB)
        k.s_lshl_b32(sT[5], sL, 1); k.s_add_u32(sT[5], sT[5], 1)
        self.res_loads(sT[5], res)
        first = True
        for jj in range(4):
            for b in range(4):
                for kk in range(4):
                    ml, nl = kk >> 1, kk & 1
                    k.v_mfma_f32_32x32x16_bf16(acc[kk], A(128 + 4*(nl*16 + jj*4 + b), 4), A(4*(ml*16 + jj*4 + b), 4), 0 if first else acc[kk])
                first = False
        hbase()
        k.s_add_u32(h0, h0, 4*KB); k.s_add_u32(h1, h1, 4*KB)
        self.cnt_off(sCnt, C_RHB, sI)
        self.wait(sCnt, 16)
        self.stamp()
        for jj in range(4):
            for b in range(3):
                for ml, hs in enumerate((h0, h1)):
                    k.buffer_load_dwordx4(A(4*(ml*12 + jj*3 + b), 4), vL0, sWS, hs, mods=f"offen offset:{b*KB} sc1" if b else "offen sc1")
            if jj < 3:
                k.s_add_u32(h0, h0, 7*KB); k.s_add_u32(h1, h1, 7*KB)
        for jj in range(4):
            for b in range(3):
                for kk in range(4):
                    ml, nl = kk >> 1, kk & 1
                    r = 4*(nl*12 + jj*3 + b)
                    k.v_mfma_f32_32x32x16_bf16(acc[kk], w2b[r:r+4], A(4*(ml*12 + jj*3 + b), 4), acc[kk])
        k.s_lshl_b32(sT[5], sL, 1); k.s_add_u32(sA[2], sT[5], 2)
        self.finish64(acc, res, sA[2], True)
        with self.if_layer(0):
            self.cnt_off(sCnt, C_RX2, sI)
            self.arrive(sCnt)
            self.stamp()
            self.dma_wq()
            self.wait(sCnt, 16)

    def build(self):
        k = self.k
        self.prologue()
        self.stamp()
        self.p0()
        self.stamp()
        phases = [self.p1, self.attn_o, self.p2b, self.p3, self.p4]
        k.label("L_layer")
        n = 0
        for ph in phases:
            ph()
            n += 1
            if self.stop_after is not None and self.stop_after % 5 == n % 5:
                lay = (self.stop_after - 1) // 5
                lab = k.label_name("cont")
                k.s_cmp_eq_u32(sL, lay); k.s_cbranch_scc1("L_fin")
        k.s_add_u32(sL, sL, 1)
        k.s_cmp_lt_u32(sL, 2)
        k.s_cbranch_scc1("L_layer")
        k.label("L_loop_end")
        k.label("L_fin")
        with self.if_wave({0}):
            k.s_mov_b64(exec_, 1)
            k.v_mov_b32(vTmp, sErr)
            k.s_cmp_lg_u32(sErr, 0)
            lab = k.label_name("noerr")
            k.s_cbranch_scc0(lab)
            k.buffer_store_dword(vTmp, "off", sDBG, 0, mods="offset:4")
            k.label(lab)
            k.s_mov_b64(exec_, -1)
        k.s_waitcnt(mods="vmcnt(0)")
        k.label("L_end")
        k.s_endpgm()

def generate(path, **kw):
    g = Gen(**kw)
    g.build()
    cfgs = []
    for w in range(4):
        for nf, ext, uA in ((8, True, True), (8, True, False), (8, False, False), (7, False, False)):
            for wg0 in ((True, False) if w == 0 else (False,)):
                cfgs.append(dict(w=w, nf=nf, ext=ext, uA=uA, wg0=wg0))
    lines = finalize(g.k, cfgs, loop=("L_layer", "L_loop_end", [dict(L=0), dict(L=1)]))
    hdr = f"""; Fused persistent kernel: 2 x (linear attention block + SwiGLU block), generated by my own generator script.
; @launch grid=(256,1,1) block=(256,1,1) lds={LDS_BYTES}
.amdgcn_target "amdgcn-amd-amdhsa--gfx950"
.text
.globl {NAME}
.p2align 8
.type {NAME},@function
{NAME}:
"""
    ftr = f"""
.section .rodata,"a"
.p2align 6
.amdhsa_kernel {NAME}
  .amdhsa_next_free_vgpr 512
  .amdhsa_next_free_sgpr 102
  .amdhsa_accum_offset 256
  .amdhsa_group_segment_fixed_size 0
  .amdhsa_kernarg_size 80
  .amdhsa_user_sgpr_count 2
  .amdhsa_user_sgpr_kernarg_segment_ptr 1
  .amdhsa_system_sgpr_workgroup_id_x 1
  .amdhsa_float_denorm_mode_32 3
.end_amdhsa_kernel
"""
    open(path, "w").write(hdr + "\n".join(lines) + ftr)
    return lines

if __name__ == "__main__":
    import argparse
    ap = argparse.ArgumentParser()
    ap.add_argument("-o", default="out.s")
    ap.add_argument("--stop", type=int, default=None)
    ap.add_argument("--stamps", action="store_true")
    a = ap.parse_args()
    l = generate(a.o, stop_after=a.stop, stamps=a.stamps)
    print(len(l), "lines")
```

```python
import sys
from fw import *

NAME = "interleave_layers__linear_attn_block__glu_gated_swiglu__prompt_kernel"
KB = 1024
CNT   = 0x0000000
WQ    = 0x0100000; WQE = 0x0280000
WO    = 0x0300000
W13   = 0x0400000; W13E = 0x0780000
W2    = 0x0800000
XB    = 0x0A00000
SB    = 0x1200000
OB    = 0x1300000
KVP   = 0x1700000
HB_   = 0x1900000
STAMP = 0x3000000
C_H0R = 0; C_H0C = 16
def C_COL(L): return 32 + 96*L
def C_RO(L):  return 32 + 96*L + 16
def C_RX1(L): return 32 + 96*L + 32
def C_RHA(L): return 32 + 96*L + 48
def C_RHB(L): return 32 + 96*L + 64
def C_RX2(L): return 32 + 96*L + 80
NCNT = 32 + 192
L_SLOT = 32*KB
L_RED  = 96*KB
L_KVS  = 100*KB
L_WQE  = 144*KB
L_MISC = 148*KB
L_W13E = 152*KB
LDS_BYTES = 160*KB
sWS = S(4,4); sOUT = S(8,4); sXR = S(12,4)
sI = S(16); sJ = S(17); sW = S(18); sL = S(19)
sT = [S(20+i) for i in range(12)]
sP = S(32,20)
sDBG = S(52,4)
sSpin = S(56); sErr = S(57); sCnt = S(58); sTgt = S(59)
sUP16 = S(60,2); sHI = S(62,2); sLO16R = S(64,2)
sA = [S(66+i) for i in range(14)]
sSt = S(80,20)
vL0 = V(0); vL1 = V(1); vL2 = V(2); vLane = V(3); vOne = V(4); vTmp = V(5); vTmp2 = V(6); vM16 = V(7)

class Gen:
    def __init__(self, stop_after=None, stamps=False, opts=None):
        self.k = K()
        self.stop_after = stop_after
        self.stamps = stamps
        self.nst = 0
        self.o = dict(opts or {})
    def if_wave(self, waves):
        k = self.k
        waves = set(waves)
        def test():
            if len(waves) == 1: k.s_cmp_eq_u32(sW, list(waves)[0])
            elif waves == {1,2,3}: k.s_cmp_lg_u32(sW, 0)
            elif waves == {0,1}: k.s_cmp_lt_u32(sW, 2)
            else: raise ValueError(waves)
        return k.when("w", waves, test, "s_cbranch_scc0")
    def if_layer(self, L):
        k = self.k
        return k.when("L", {L}, lambda: k.s_cmp_eq_u32(sL, L), "s_cbranch_scc0")
    def stamp(self, name=""):
        if not self.stamps: return
        k = self.k
        k.s_memrealtime(S(80, 2))
        k.s_memtime(S(84, 2))
        k.s_waitcnt(mods="lgkmcnt(0)")
        k.s_mov_b32(m0, S(82))
        k.s_nop(0)
        k.v_writelane_b32(V(255), S(80), m0)
        k.v_writelane_b32(V(254), S(84), m0)
        k.s_add_u32(S(82), S(82), 1)
    def cnt_off(self, dst, cidx_fn, grp):
        k = self.k
        c0, c1 = cidx_fn(0), cidx_fn(1)
        k.s_mul_i32(dst, sL, (c1-c0)*256)
        k.s_lshl_b32(sT[11], grp, 8)
        k.s_add_u32(dst, dst, sT[11])
        if c0: k.s_add_u32(dst, dst, c0*256)
    def arrive(self, cnt, wait_stores=True):
        k = self.k
        if wait_stores: k.s_waitcnt(mods="vmcnt(0) lgkmcnt(0)")
        k.s_barrier()
        with self.if_wave({0}):
            k.s_mov_b64(exec_, 1)
            k.buffer_atomic_add(vOne, "off", sWS, cnt)
            k.s_mov_b64(exec_, -1)
    def poll(self, cnt, target):
        k = self.k
        lp = k.label_name("poll"); done = k.label_name("got")
        k.s_mov_b64(exec_, 1)
        k.s_mov_b32(sSpin, 0)
        k.label(lp)
        k.buffer_load_dword(vTmp, "off", sWS, cnt, mods="sc1")
        k.s_add_u32(sSpin, sSpin, 1)
        k.s_waitcnt(mods="vmcnt(0)")
        k.v_readfirstlane_b32(sT[10], vTmp)
        k.s_cmp_ge_u32(sT[10], target)
        k.s_cbranch_scc1(done)
        k.s_cmp_lt_u32(sSpin, 0x40000)
        k.s_cbranch_scc1(lp)
        k.s_mov_b32(sErr, 1)
        k.label(done)
        k.s_mov_b64(exec_, -1)
    def wait(self, cnt, target=16):
        with self.if_wave({0}):
            self.poll(cnt, target)
        self.k.s_barrier()
    def frag_loads(self, dst_fn, n, soff, stride=KB, tag=None, tmp=None, lds=False):
        k = self.k
        per = 4 if stride == KB else 1
        for t in range(n):
            im = (t % per) * KB
            k.buffer_load_dwordx4(dst_fn(t), vL0, sWS, soff, mods=f"offen offset:{im} sc1" if im else "offen sc1", tag=tag)
            if (t % per) == per-1 and t != n-1:
                k.s_add_u32(soff, soff, per*stride)
    def dma(self, n, soff, ldsoff, tag):
        k = self.k
        for t in range(n):
            im = (t % 4) * KB
            if t % 4 == 0:
                k.s_mov_b32(m0, ldsoff)
            k.buffer_load_dwordx4(vL0, sWS, soff, mods=(f"offen offset:{im} sc1 lds" if im else "offen sc1 lds"), tag=tag)
            if t % 4 == 3 and t != n-1:
                k.s_add_u32(soff, soff, 4*KB)
                k.s_add_u32(ldsoff, ldsoff, 4*KB)
    def cross_half_add(self, x, t):
        k = self.k
        k.v_mov_b32(t, x)
        k.v_permlane32_swap_b32(x, t)
        k.v_add_f32(x, x, t)
    def block_stats(self, f, tmp, mean, m2):
        k = self.k
        t = tmp
        for i in range(4): k.v_pk_add_f32(t[2*i:2*i+2], f[4*i:4*i+2], f[4*i+2:4*i+4])
        k.v_pk_add_f32(t[0:2], t[0:2], t[2:4]); k.v_pk_add_f32(t[4:6], t[4:6], t[6:8])
        k.v_pk_add_f32(t[0:2], t[0:2], t[4:6])
        k.v_add_f32(mean, t[0], t[1])
        self.cross_half_add(mean, t[2])
        k.v_mul_f32(mean, 1.0/32, mean)
        for i in range(8):
            k.v_pk_add_f32(t[2*i:2*i+2], f[2*i:2*i+2], R("v", mean.i, 2) if False else V(mean.i, 2), mods="op_sel_hi:[1,0] neg_lo:[0,1] neg_hi:[0,1]")
        k.v_pk_mul_f32(f[0:2] if False else t[0:2], t[0:2], t[0:2])
        for i in range(1, 8):
            k.v_pk_fma_f32(t[0:2], t[2*i:2*i+2], t[2*i:2*i+2], t[0:2])
        k.v_add_f32(m2, t[0], t[1])
        self.cross_half_add(m2, t[2])
    def unpack(self, d, f):
        k = self.k
        for i in range(d.n):
            k.v_lshlrev_b32(f[2*i], 16, d[i])
            k.v_and_b32(f[2*i+1], 0xffff0000, d[i])
    def store_x_and_stats(self, pk, f, tmp, sX, sS, ms):
        k = self.k
        k.buffer_store_dwordx4(pk[0:4], vL0, sWS, sX, mods="offen sc1", tag="st")
        k.buffer_store_dwordx4(pk[4:8], vL0, sWS, sX, mods="offen offset:1024 sc1", tag="st")
        self.block_stats(f, tmp, ms[0], ms[1])
        k.buffer_store_dwordx2(ms, vM16, sWS, sS, mods="offen sc1", tag="st")
    def s_stat_off(self, dst, n_expr_s, mb, nb32, t0, t1):
        k = self.k
        k.s_lshl_b32(dst, n_expr_s, 18)
        k.s_lshl_b32(t0, mb, 12); k.s_add_u32(dst, dst, t0)
        k.s_lshr_b32(t0, nb32, 1); k.s_and_b32(t0, t0, 3); k.s_lshl_b32(t0, t0, 10); k.s_add_u32(dst, dst, t0)
        k.s_lshr_b32(t0, nb32, 3); k.s_lshl_b32(t0, t0, 9); k.s_add_u32(dst, dst, t0)
        k.s_and_b32(t0, nb32, 1); k.s_lshl_b32(t0, t0, 3); k.s_add_u32(dst, dst, t0)
        k.s_add_u32(dst, dst, SB)

    def prologue(self):
        k = self.k
        k.s_cmp_ge_u32(S(2), 256)
        k.s_cbranch_scc1("L_end")
        k.s_load_dwordx16(sP[0:16], S(0,2), 0)
        k.s_load_dwordx4(sP[16:20], S(0,2), 64)
        k.v_and_b32(vLane, 63, V(0))
        k.v_lshrrev_b32(vTmp, 6, V(0))
        k.v_readfirstlane_b32(sW, vTmp)
        k.s_and_b32(sT[0], S(2), 7); k.s_lshr_b32(sT[1], S(2), 3)
        mp = self.o.get("map", "C")
        if mp == "A":
            k.s_lshr_b32(sT[2], sT[1], 4); k.s_lshl_b32(sT[2], sT[2], 3)
            k.s_add_u32(sI, sT[0], sT[2]); k.s_and_b32(sJ, sT[1], 15)
        elif mp == "B":
            k.s_lshr_b32(sT[2], sT[0], 1); k.s_lshl_b32(sT[2], sT[2], 2); k.s_lshr_b32(sT[3], sT[1], 3); k.s_add_u32(sI, sT[2], sT[3])
            k.s_and_b32(sT[2], sT[0], 1); k.s_lshl_b32(sT[2], sT[2], 3); k.s_and_b32(sT[3], sT[1], 7); k.s_add_u32(sJ, sT[2], sT[3])
        else:
            k.s_lshr_b32(sT[2], sT[0], 2); k.s_lshl_b32(sT[2], sT[2], 3); k.s_lshr_b32(sT[3], sT[1], 2); k.s_add_u32(sI, sT[2], sT[3])
            k.s_and_b32(sT[2], sT[0], 3); k.s_lshl_b32(sT[2], sT[2], 2); k.s_and_b32(sT[3], sT[1], 3); k.s_add_u32(sJ, sT[2], sT[3])
        k.s_mov_b32(sL, 0); k.s_mov_b32(sErr, 0)
        k.v_lshlrev_b32(vL0, 4, vLane)
        k.v_add_u32(vL1, 0x10000, vL0)
        k.v_add_u32(vL2, 0x20000, vL0)
        k.v_mov_b32(vOne, 1)
        k.v_and_b32(vM16, 31, vLane); k.v_lshlrev_b32(vM16, 4, vM16)
        k.s_mov_b32(sUP16[0], 0xffff0000); k.s_mov_b32(sUP16[1], 0xffff0000)
        k.s_mov_b32(sHI[0], 0); k.s_mov_b32(sHI[1], -1)
        k.s_waitcnt(mods="lgkmcnt(0)")
        for srd, p, n in ((sWS, sP[18:20], 0x10000000), (sOUT, sP[14:16], 2*1024*1024), (sXR, sP[0:2], 2*1024*1024), (sDBG, sP[16:18], 256)):
            k.s_mov_b32(srd[0], p[0]); k.s_mov_b32(srd[1], p[1]); k.s_mov_b32(srd[2], n); k.s_mov_b32(srd[3], 0x20000)

    def p0(self):
        k = self.k
        with k.when("wg0", {True}, lambda: (k.s_or_b32(sT[0], S(2), sW), k.s_cmp_eq_u32(sT[0], 0)), "s_cbranch_scc0"):
            k.v_lshlrev_b32(vTmp, 8, vLane)
            k.v_mov_b32(vTmp2, 0)
            for c in range(4):
                k.s_mov_b32(sT[1], CNT + c*64*256)
                k.buffer_store_dword(vTmp2, vTmp, sWS, sT[1], mods="offen sc1")
            k.s_waitcnt(mods="vmcnt(0)")
            k.s_mov_b64(exec_, 1)
            k.buffer_store_dword(vOne, "off", sDBG, 0, mods="sc1")
            k.s_mov_b64(exec_, -1)
        xr = V(8, 8)
        mb = sA[0]; nb = sA[1]
        k.s_lshr_b32(sT[0], sJ, 2); k.s_lshl_b32(mb, sI, 2); k.s_add_u32(mb, mb, sT[0])
        k.s_and_b32(sT[0], sJ, 3); k.s_lshl_b32(nb, sT[0], 2); k.s_add_u32(nb, nb, sW)
        va = V(16)
        k.v_and_b32(va, 31, vLane); k.v_lshlrev_b32(va, 10, va)
        k.v_lshrrev_b32(vTmp, 5, vLane); k.v_lshlrev_b32(vTmp, 3, vTmp); k.v_add_u32(va, va, vTmp)
        k.s_lshl_b32(sT[0], mb, 15); k.s_lshl_b32(sT[1], nb, 6); k.s_add_u32(sT[0], sT[0], sT[1])
        for q in range(4):
            k.buffer_load_dwordx2(xr[2*q:2*q+2], va, sXR, sT[0], mods=f"offen offset:{16*q}" if q else "offen")
        u = sI; j = sJ
        b0 = sA[2]; b0h = sA[3]; b1 = sA[4]; b1h = sA[5]; pitch = sA[6]; col0 = sA[7]; krow = sA[8]; dst = sA[9]; ext = sA[10]; ccm = sA[11]; nf = sA[12]
        t0, t1, t2 = sT[0], sT[1], sT[2]
        lA = k.label_name("uA"); lB = k.label_name("uB"); lC = k.label_name("uC"); lD = k.label_name("uD"); lE = k.label_name("uE")
        k.s_mov_b32(ccm, 31); k.s_mov_b32(nf, 8); k.s_mov_b32(krow, 0); k.s_mov_b32(ext, 0)
        k.s_cmp_lt_u32(u, 3); k.s_cbranch_scc1(lA)
        k.s_cmp_lt_u32(u, 10); k.s_cbranch_scc1(lB)
        k.s_cmp_lt_u32(u, 12); k.s_cbranch_scc1(lC)
        k.s_mov_b32(b0, sP[12]); k.s_mov_b32(b0h, sP[13]); k.s_mov_b32(pitch, 1024)
        k.s_lshl_b32(col0, j, 5); k.s_sub_u32(t0, u, 12); k.s_mul_i32(krow, t0, 448)
        k.s_mul_i32(dst, j, 112*KB); k.s_mul_i32(t0, t0, 28*KB); k.s_add_u32(dst, dst, t0); k.s_add_u32(dst, dst, W2)
        k.s_mov_b32(nf, 7)
        k.s_mov_b32(b1, b0); k.s_mov_b32(b1h, b0h)
        k.s_branch(lE)
        k.label(lA)
        k.s_mov_b32(b0, sP[2]); k.s_mov_b32(b0h, sP[3]); k.s_mov_b32(pitch, 3072)
        k.s_lshl_b32(col0, u, 9); k.s_lshl_b32(t0, j, 5); k.s_add_u32(col0, col0, t0)
        k.s_mul_i32(t0, j, 3); k.s_add_u32(t0, t0, u); k.s_lshl_b32(dst, t0, 15); k.s_add_u32(dst, dst, WQ)
        k.s_lshl_b32(t0, j, 2); k.s_add_u32(t0, t0, u); k.s_lshl_b32(ext, t0, 10); k.s_add_u32(ext, ext, WQE)
        k.s_mov_b32(b1, b0); k.s_mov_b32(b1h, b0h)
        k.s_branch(lE)
        k.label(lB)
        k.s_mov_b32(b0, sP[8]); k.s_mov_b32(b0h, sP[9]); k.s_mov_b32(b1, sP[10]); k.s_mov_b32(b1h, sP[11]); k.s_mov_b32(pitch, 3584)
        k.s_sub_u32(t1, u, 3); k.s_mul_i32(t0, j, 7); k.s_add_u32(t0, t0, t1)
        k.s_lshl_b32(col0, t0, 4)
        k.s_lshl_b32(dst, t0, 15); k.s_add_u32(dst, dst, W13)
        k.s_lshl_b32(t0, j, 3); k.s_add_u32(t0, t0, t1); k.s_lshl_b32(ext, t0, 10); k.s_add_u32(ext, ext, W13E)
        k.s_mov_b32(ccm, 15)
        k.s_branch(lE)
        k.label(lC)
        k.s_mov_b32(b0, sP[4]); k.s_mov_b32(b0h, sP[5]); k.s_mov_b32(pitch, 1024)
        k.s_sub_u32(t1, u, 10); k.s_and_b32(t0, j, 7); k.s_lshl_b32(t0, t0, 1); k.s_add_u32(t0, t0, t1); k.s_lshl_b32(col0, t0, 5)
        k.s_lshl_b32(t0, j, 1); k.s_add_u32(t0, t0, t1); k.s_lshl_b32(dst, t0, 15); k.s_add_u32(dst, dst, WO)
        k.s_mov_b32(b1, b0); k.s_mov_b32(b1h, b0h)
        k.label(lE)
        k.s_mul_i32(t0, sW, nf); k.s_lshl_b32(t1, t0, 4); k.s_add_u32(krow, krow, t1)
        k.s_lshl_b32(t0, t0, 10); k.s_add_u32(dst, dst, t0)
        ad = V(18, 2); c = V(20); cc = V(21)
        k.v_and_b32(c, 31, vLane)
        k.v_and_b32(cc, ccm, c)
        k.v_add_u32(cc, col0, cc); k.v_lshlrev_b32(cc, 1, cc)
        k.v_lshrrev_b32(vTmp, 5, vLane); k.v_lshlrev_b32(vTmp, 2, vTmp); k.v_add_u32(vTmp, krow, vTmp)
        k.v_mul_lo_u32(vTmp, vTmp, pitch); k.v_add_u32(cc, cc, vTmp)
        k.v_mov_b32(ad[0], b0); k.v_mov_b32(ad[1], b0h)
        k.v_mov_b32(vTmp, b1); k.v_mov_b32(vTmp2, b1h)
        k.v_cndmask_b32(ad[0], ad[0], vTmp, sUP16); k.v_cndmask_b32(ad[1], ad[1], vTmp2, sUP16)
        o64 = V(22, 2)
        k.v_mov_b32(o64[1], 0); k.v_mov_b32(o64[0], cc)
        k.v_lshl_add_u64(ad, o64, 0, ad)
        p1 = S(80, 2) if False else R("s", 94, 2); p5 = R("s", 96, 2)
        k.s_mov_b32(p1[0], pitch); k.s_mov_b32(p1[1], 0); k.s_mul_i32(p5[0], pitch, 5); k.s_mov_b32(p5[1], 0)
        U = V(24, 32); UR = V(100, 64)
        def frag(f):
            for j8 in range(8):
                k.emit("global_load_ushort", UR[8*f + j8], ad, "off", tag="u")
                if not (f == 7 and j8 == 7):
                    k.v_lshl_add_u64(ad, ad, 0, p5 if (j8 & 3) == 3 else p1)
        def pack(f):
            for d in range(4): k.v_lshl_or_b32(U[4*f + d], UR[8*f + 2*d + 1], 16, UR[8*f + 2*d])
        for f in range(7): frag(f)
        with k.when("nf", {8}, lambda: k.s_cmp_eq_u32(nf, 8), "s_cbranch_scc0"):
            frag(7)
        f = V(56, 16); tmp = V(72, 16); ms = V(88, 2)
        self.unpack(xr, f)
        k.s_lshl_b32(sT[0], mb, 15); k.s_lshl_b32(sT[1], nb, 11); k.s_add_u32(sT[0], sT[0], sT[1]); k.s_add_u32(sT[0], sT[0], XB)
        k.s_mov_b32(sT[3], 0)
        self.s_stat_off(sT[1], sT[3], mb, nb, sT[2], None)
        self.store_x_and_stats(xr, f, tmp, sT[0], sT[1], ms)
        for fi in range(7):
            pack(fi)
            k.buffer_store_dwordx4(U[4*fi:4*fi+4], vL0, sWS, dst, mods=f"offen offset:{(fi%4)*KB} sc1" if fi % 4 else "offen sc1", tag="st")
            if fi == 3: k.s_add_u32(dst, dst, 4*KB)
        with k.when("nf", {8}, lambda: k.s_cmp_eq_u32(nf, 8), "s_cbranch_scc0"):
            pack(7)
            k.buffer_store_dwordx4(U[28:32], vL0, sWS, dst, mods=f"offen offset:{3*KB} sc1", tag="st")
        with k.when("ext", {True}, lambda: k.s_cmp_lg_u32(ext, 0), "s_cbranch_scc0"):
            acc = V(56, 2); t = V(58, 2)
            k.v_mov_b32(acc[0], 0); k.v_mov_b32(acc[1], 0)
            for i in range(32):
                k.v_lshlrev_b32(t[0], 16, U[i]); k.v_and_b32(t[1], 0xffff0000, U[i])
                k.v_pk_add_f32(acc, acc, t)
            k.v_add_f32(acc[0], acc[0], acc[1])
            self.cross_half_add(acc[0], t[0])
            k.v_and_b32(t[0], 31, vLane); k.v_lshlrev_b32(t[0], 2, t[0])
            k.s_lshl_b32(sT[0], sW, 7); k.s_add_u32(sT[0], sT[0], L_MISC)
            k.v_add_u32(t[1], sT[0], t[0])
            k.ds_write_b32(t[1], acc[0])
            k.s_waitcnt(mods="lgkmcnt(0)")
            k.s_barrier()
            with self.if_wave({0}):
                k.v_add_u32(t[0], L_MISC, t[0])
                r4 = V(60, 4)
                for w in range(4): k.ds_read_b32(r4[w], t[0], mods=f"offset:{128*w}" if w else "")
                k.v_add_f32(r4[0], r4[0], r4[1]); k.v_add_f32(r4[2], r4[2], r4[3]); k.v_add_f32(r4[0], r4[0], r4[2])
                e = V(64, 4)
                k.v_cvt_pk_bf16_f32(e[0], r4[0], r4[0])
                k.v_lshlrev_b32(r4[1], 16, e[0])
                k.v_sub_f32(r4[1], r4[0], r4[1])
                k.v_cvt_pk_bf16_f32(e[0], r4[0], r4[1])
                k.v_and_b32(e[1], 0xffff, e[0])
                k.v_mov_b32(e[2], 0); k.v_mov_b32(e[3], 0)
                k.v_cndmask_b32(e[0], e[0], e[2], sHI); k.v_cndmask_b32(e[1], e[1], e[2], sHI)
                k.buffer_store_dwordx4(e, vL0, sWS, ext, mods="offen sc1", tag="st")
        k.s_waitcnt(mods="vmcnt(0) lgkmcnt(0)")
        k.s_barrier()
        with self.if_wave({0}):
            lp = k.label_name("ip"); dn = k.label_name("ig")
            k.s_mov_b64(exec_, 1)
            k.s_mov_b32(sSpin, 0)
            k.label(lp)
            k.buffer_load_dword(vTmp, "off", sDBG, 0, mods="sc1")
            k.s_add_u32(sSpin, sSpin, 1)
            k.s_waitcnt(mods="vmcnt(0)")
            k.v_readfirstlane_b32(sT[10], vTmp)
            k.s_cmp_lg_u32(sT[10], 0)
            k.s_cbranch_scc1(dn)
            k.s_cmp_lt_u32(sSpin, 0x40000)
            k.s_cbranch_scc1(lp)
            k.s_mov_b32(sErr, 1)
            k.label(dn)
            k.s_lshl_b32(sT[0], sI, 8); k.s_add_u32(sT[0], sT[0], C_H0R*256)
            k.buffer_atomic_add(vOne, "off", sWS, sT[0])
            with k.when("uA", {True}, lambda: k.s_cmp_lt_u32(sI, 3), "s_cbranch_scc0"):
                k.s_lshl_b32(sT[0], sJ, 8); k.s_add_u32(sT[0], sT[0], C_H0C*256)
                k.buffer_atomic_add(vOne, "off", sWS, sT[0])
            k.s_mov_b64(exec_, -1)
            k.s_lshl_b32(sCnt, sI, 8); k.s_add_u32(sCnt, sCnt, C_H0R*256)
            self.poll(sCnt, 16)
            k.s_lshl_b32(sCnt, sJ, 8); k.s_add_u32(sCnt, sCnt, C_H0C*256)
            self.poll(sCnt, 3)
        k.s_barrier()

    def weave(self, slots, fillers, start=0, per=3):
        k = self.k
        fi = 0
        for n, s in enumerate(slots):
            k.put(s)
            if n >= start:
                c = per(n) if callable(per) else per
                take = fillers[fi:fi+c]; fi += len(take)
                k.put(take)
        k.put(fillers[fi:])

    def ln_stats(self, st, mean, rstd, xext, t):
        k = self.k
        k.v_pk_add_f32(t[0:2], st[0:2], st[2:4]); k.v_pk_add_f32(t[2:4], st[4:6], st[6:8])
        k.v_pk_add_f32(t[0:2], t[0:2], t[2:4])
        k.v_pk_add_f32(t[2:4], st[8:10], st[10:12]); k.v_pk_add_f32(t[0:2], t[0:2], t[2:4])
        k.v_pk_add_f32(t[2:4], st[12:14], st[14:16]); k.v_pk_add_f32(t[0:2], t[0:2], t[2:4])
        self.cross_half_add(t[0], t[2])
        k.v_mul_f32(mean, 1.0/16, t[0])
        k.v_mov_b32(t[2], 0)
        for b in range(8):
            k.v_sub_f32(t[3], st[2*b], mean)
            k.v_fmac_f32(t[2], t[3], t[3])
        k.v_mov_b32(t[3], 32.0)
        k.v_fmac_f32(t[1], t[2], t[3])
        self.cross_half_add(t[1], t[2])
        k.v_mov_b32(t[2], 1e-5)
        k.v_fmac_f32(t[2], 1.0/512, t[1])
        k.v_rsq_f32(rstd, t[2])
        k.v_sub_f32(t[0], 0, mean)
        k.v_cvt_pk_bf16_f32(xext[0], t[0], t[0])
        k.v_lshlrev_b32(t[1], 16, xext[0])
        k.v_sub_f32(t[1], t[0], t[1])
        k.v_mov_b32(xext[2], 0); k.v_mov_b32(xext[3], 0)
        k.v_cvt_pk_bf16_f32(xext[1], t[1], xext[2])
        k.v_cndmask_b32(xext[0], xext[0], xext[2], sHI)
        k.v_cndmask_b32(xext[1], xext[1], xext[2], sHI)

    def load_x(self, n_s, st):
        k = self.k
        mb = sT[0]
        k.s_lshl_b32(mb, sI, 2); k.s_add_u32(mb, mb, sW)
        k.s_lshl_b32(sT[1], n_s, 18); k.s_lshl_b32(sT[2], mb, 12); k.s_add_u32(sT[1], sT[1], sT[2]); k.s_add_u32(sT[1], sT[1], SB)
        for c in range(4):
            k.buffer_load_dwordx4(st[4*c:4*c+4], vL0, sWS, sT[1], mods=f"offen offset:{c*KB} sc1" if c else "offen sc1")
        k.s_lshl_b32(sT[1], n_s, 21); k.s_lshl_b32(sT[2], mb, 15); k.s_add_u32(sT[1], sT[1], sT[2]); k.s_add_u32(sT[1], sT[1], XB)
        self.frag_loads(lambda t: A(4*t, 4), 32, sT[1], tag="x")

    def dma_wq(self):
        k = self.k
        with self.if_wave({1,2,3}):
            k.s_sub_u32(sT[0], sW, 1)
            k.s_mul_i32(sT[1], sJ, 3); k.s_add_u32(sT[1], sT[1], sT[0]); k.s_lshl_b32(sT[1], sT[1], 15); k.s_add_u32(sT[1], sT[1], WQ)
            k.s_lshl_b32(sT[2], sT[0], 15)
            self.dma(32, sT[1], sT[2], "dmaq")
            k.s_lshl_b32(sT[1], sJ, 2); k.s_add_u32(sT[1], sT[1], sT[0]); k.s_lshl_b32(sT[1], sT[1], 10); k.s_add_u32(sT[1], sT[1], WQE)
            k.s_lshl_b32(sT[2], sT[0], 10); k.s_add_u32(sT[2], sT[2], L_WQE)
            self.dma(1, sT[1], sT[2], "dmaq")

    def lds_addr(self, off):
        if off < 0x10000: return vL0, off
        if off < 0x20000: return vL1, off - 0x10000
        return vL2, off - 0x20000
    def ds_frag(self, dst, off):
        b, im = self.lds_addr(off)
        self.k.ds_read_b128(dst, b, mods=f"offset:{im}" if im else "")

    LOG2E = 1.4426950408889634
    def phi(self, src, rs, rc, dst, t, cE):
        k = self.k
        n = src.n
        for i in range(n): k.v_mul_f32(t[i], src[i], rc(i))
        for i in range(n): k.v_min_f32(t[i], 0, t[i])
        for i in range(n): k.v_exp_f32(t[i], t[i])
        for i in range(n): k.v_fma_f32(dst[i], src[i], rs(i), cE)
        for i in range(n): k.v_max_f32(dst[i], cE, dst[i])
        for i in range(n): k.v_add_f32(dst[i], dst[i], t[i])

    def p1(self):
        k = self.k
        st = V(8, 16); accK = V(24, 16); accV = V(40, 16); accQ = V(56, 16)
        wb = [V(72 + 4*i, 4) for i in range(6)]
        xext = V(96, 4); rD = V(100, 16); rcD = V(116, 16); tmp = V(132, 16); pk = V(148, 16)
        mean = V(164); rstd = V(165); t4 = V(166, 4); cE = V(170); rc = V(171)
        pkF = V(172, 8); vF = V(180, 8); ones = V(188, 4); kvD = V(192, 16); zD = V(208, 16)
        self.pqF = pqF = V(224, 8)
        with self.if_layer(0):
            self.dma_wq()
        k.s_lshl_b32(sT[5], sL, 1)
        self.load_x(sT[5], st)
        if self.o.get("fine1"): self.stamp()
        k.waittag("dmaq")
        k.s_barrier()
        if self.o.get("fine1"): self.stamp()
        with k.capture() as fl:
            self.ln_stats(st, mean, rstd, xext, t4)
            k.s_lshl_b32(sT[0], sW, 7); k.s_add_u32(sT[0], sT[0], L_MISC)
            k.v_lshrrev_b32(t4[0], 2, vM16); k.v_add_u32(t4[0], sT[0], t4[0])
            k.ds_write_b32(t4[0], rstd)
            k.v_lshrrev_b32(t4[1], 5, vLane); k.v_lshlrev_b32(t4[1], 4, t4[1]); k.v_add_u32(t4[1], sT[0], t4[1])
            for g in range(4): k.ds_read_b128(rD[4*g:4*g+4], t4[1], mods=f"offset:{32*g}" if g else "")
            k.v_mul_f32(rc, self.LOG2E, rstd)
            for i in range(16): k.v_mul_f32(rcD[i], self.LOG2E, rD[i])
            k.v_mov_b32(cE, 1e-6)
            for i in range(4): k.v_mov_b32(ones[i], 0x3f803f80)
        uses = []
        for t in range(32):
            uses.append((accK, t, L_SLOT*1 + t*KB)); uses.append((accV, t, L_SLOT*2 + t*KB))
        uses.append((accK, 32, L_WQE + 1*KB)); uses.append((accV, 32, L_WQE + 2*KB))
        D = 4
        slots = []
        pre = []
        with k.capture() as pre:
            for u in range(D): self.ds_frag(wb[u % 6], uses[u][2])
        k.put(pre)
        for u, (acc, t, off) in enumerate(uses):
            with k.capture() as s:
                xa = A(4*t, 4) if t < 32 else xext
                k.v_mfma_f32_32x32x16_bf16(acc, xa, wb[u % 6], 0 if t == 0 else acc)
                if u + D < len(uses): self.ds_frag(wb[(u + D) % 6], uses[u + D][2])
                if self.o.get("fine1") and u in (0, 16, 32, 48): self.stamp()
            slots.append(s)
        self.weave(slots, fl, start=6, per=2)
        self.stamp()
        self.phi(accK, lambda i: rD[i], lambda i: rcD[i], pk, tmp, cE)
        for i in range(16): k.v_mul_f32(accV[i], accV[i], rD[i])
        for i in range(8): k.v_cvt_pk_bf16_f32(pkF[i], pk[2*i], pk[2*i+1])
        for i in range(8): k.v_cvt_pk_bf16_f32(vF[i], accV[2*i], accV[2*i+1])
        k.v_mfma_f32_32x32x16_bf16(kvD, pkF[0:4], vF[0:4], 0)
        k.v_mfma_f32_32x32x16_bf16(zD, ones, pkF[0:4], 0)
        k.v_mfma_f32_32x32x16_bf16(kvD, pkF[4:8], vF[4:8], kvD)
        k.v_mfma_f32_32x32x16_bf16(zD, ones, pkF[4:8], zD)
        usesq = [(t, t*KB) for t in range(32)] + [(32, L_WQE)]
        for u in range(D): self.ds_frag(wb[u % 6], usesq[u][1])
        sel = tmp[0:8]
        for i in range(8): k.v_cndmask_b32(sel[i], kvD[i], kvD[8+i], sUP16)
        va = t4[0]; vz = t4[1]
        k.s_mul_i32(sT[0], sW, 2304); k.s_add_u32(sT[0], sT[0], L_KVS)
        k.v_add_u32(va, sT[0], vL0)
        k.ds_write_b128(va, sel[0:4]); k.ds_write_b128(va, sel[4:8], mods="offset:1024")
        k.v_lshrrev_b32(vz, 2, vM16); k.v_add_u32(vz, sT[0], vz)
        k.ds_write_b32(vz, zD[0], mods="offset:2048")
        k.s_waitcnt(mods="lgkmcnt(0)")
        k.s_barrier()
        slot = sA[0]
        k.s_lshl_b32(slot, sJ, 4); k.s_add_u32(slot, slot, sI); k.s_lshl_b32(slot, slot, 12)
        k.s_lshl_b32(sT[0], sL, 20); k.s_add_u32(slot, slot, sT[0]); k.s_add_u32(slot, slot, KVP)
        with self.if_wave({0,1}):
            k.s_lshl_b32(sT[0], sW, 10); k.s_add_u32(sT[1], sT[0], L_KVS)
            k.v_add_u32(va, sT[1], vL0)
            r = tmp
            for w in range(4): k.ds_read_b128(r[4*w:4*w+4], va, mods=f"offset:{2304*w}" if w else "")
            k.v_pk_add_f32(r[0:2], r[0:2], r[4:6]); k.v_pk_add_f32(r[2:4], r[2:4], r[6:8])
            k.v_pk_add_f32(r[8:10], r[8:10], r[12:14]); k.v_pk_add_f32(r[10:12], r[10:12], r[14:16])
            k.v_pk_add_f32(r[0:2], r[0:2], r[8:10]); k.v_pk_add_f32(r[2:4], r[2:4], r[10:12])
            k.s_add_u32(sT[1], slot, sT[0])
            k.buffer_store_dwordx4(r[0:4], vL0, sWS, sT[1], mods="offen sc1", tag="st")
        with self.if_wave({2}):
            k.v_lshrrev_b32(vz, 2, vM16); k.v_add_u32(va, L_KVS, vz)
            r = tmp
            for w in range(4): k.ds_read_b32(r[w], va, mods=f"offset:{2304*w + 2048}")
            k.v_add_f32(r[0], r[0], r[1]); k.v_add_f32(r[2], r[2], r[3]); k.v_add_f32(r[0], r[0], r[2])
            k.buffer_store_dword(r[0], vz, sWS, slot, mods="offen offset:2048 sc1", tag="st")
        self.cnt_off(sCnt, C_COL, sJ)
        self.arrive(sCnt)
        self.stamp()
        for nl in range(2):
            k.s_and_b32(sT[0], sW, 1); k.s_xor_b32(sT[0], sT[0], nl)
            k.s_lshl_b32(sT[1], sJ, 1); k.s_add_u32(sT[1], sT[1], sT[0]); k.s_lshl_b32(sT[1], sT[1], 15)
            k.s_lshl_b32(sT[2], sW, 13); k.s_add_u32(sT[1], sT[1], sT[2]); k.s_add_u32(sT[1], sT[1], WO)
            self.frag_loads(lambda t: A(128 + 4*(nl*8 + t), 4), 8, sT[1], tag="wo")
        for u, (t, off) in enumerate(usesq):
            xa = A(4*t, 4) if t < 32 else xext
            k.v_mfma_f32_32x32x16_bf16(accQ, wb[u % 6], xa, 0 if t == 0 else accQ)
            if u + D < len(usesq): self.ds_frag(wb[(u + D) % 6], usesq[u + D][1])
        self.phi(accQ, lambda i: rstd, lambda i: rc, pk, tmp, cE)
        for i in range(8): k.v_cvt_pk_bf16_f32(pqF[i], pk[2*i], pk[2*i+1])
        self.stamp()

    def attn_o(self):
        k = self.k
        pqF = self.pqF
        self.cnt_off(sCnt, C_COL, sJ)
        self.wait(sCnt, 16)
        self.stamp()
        P = V(8, 32); z = V(40, 2); t = V(44, 8); kvA = [V(56, 4), V(60, 4)]; acc = V(64, 32); ad = V(96, 4); D_ = [V(100, 16), V(116, 16)]; o = V(132, 8); of = V(140, 4)
        base = sA[0]
        k.s_lshl_b32(base, sJ, 4); k.s_lshl_b32(sT[0], sW, 2); k.s_add_u32(base, base, sT[0]); k.s_lshl_b32(base, base, 12)
        k.s_lshl_b32(sT[0], sL, 20); k.s_add_u32(base, base, sT[0]); k.s_add_u32(base, base, KVP)
        k.s_mov_b32(sT[1], base)
        for s in range(4):
            for p in range(2):
                k.buffer_load_dwordx4(P[8*s + 4*p: 8*s + 4*p + 4], vL0, sWS, sT[1], mods=f"offen offset:{p*KB} sc1" if p else "offen sc1")
            if s < 3: k.s_add_u32(sT[1], sT[1], 4096)
        vz = t[0]
        k.v_lshrrev_b32(vz, 2, vM16); k.v_lshrrev_b32(t[1], 5, vLane); k.v_lshlrev_b32(t[1], 12, t[1]); k.v_add_u32(vz, vz, t[1])
        k.buffer_load_dword(z[0], vz, sWS, base, mods="offen offset:2048 sc1")
        k.s_add_u32(sT[1], base, 8192)
        k.buffer_load_dword(z[1], vz, sWS, sT[1], mods="offen offset:2048 sc1")
        row = t[2]; hf = t[3]
        k.v_and_b32(row, 31, vLane); k.v_lshrrev_b32(hf, 5, vLane)
        k.v_and_b32(t[4], 0x1b, row); k.v_cmp_eq_u32(vcc, 16, t[4])
        k.s_mov_b64(sLO16R, vcc)
        k.v_cmp_gt_u32(vcc, 16, row)
        for h in range(2):
            for p in range(2):
                a_ = ad[2*h + p]
                k.v_lshlrev_b32(t[5], 4, hf); k.v_add_u32(t[5], 2048 + 64*h + 32*p, t[5])
                k.v_mov_b32(t[6], 2176)
                k.v_cndmask_b32(t[5], t[6], t[5], sLO16R)
                k.v_lshlrev_b32(t[6], 5, hf); k.v_add_u32(t[6], t[6], row); k.v_lshlrev_b32(t[6], 4, t[6]); k.v_add_u32(t[6], p*1024 + 256*h, t[6])
                k.v_cndmask_b32(a_, t[5], t[6], vcc)
                k.v_add_u32(a_, L_KVS, a_)
        for s in range(1, 4):
            for q in range(4): k.v_pk_add_f32(P[2*q:2*q+2], P[2*q:2*q+2], P[8*s + 2*q: 8*s + 2*q + 2])
        k.v_add_f32(z[0], z[0], z[1])
        self.cross_half_add(z[0], z[1])
        va = t[5]; vw = t[6]
        k.s_mul_i32(sT[0], sW, 2304); k.s_add_u32(sT[0], sT[0], L_KVS)
        k.v_add_u32(va, sT[0], vL0)
        k.ds_write_b128(va, P[0:4]); k.ds_write_b128(va, P[4:8], mods="offset:1024")
        k.v_lshrrev_b32(vw, 2, vM16); k.v_add_u32(vw, sT[0], vw)
        k.ds_write_b32(vw, z[0], mods="offset:2048")
        k.v_mov_b32(z[1], 0)
        k.ds_write_b32(vw, z[1], mods="offset:2176")
        k.s_waitcnt(mods="lgkmcnt(0)")
        k.s_barrier()
        for h in range(2):
            for p in range(2):
                for w in range(4):
                    k.ds_read_b128(acc[16*p + 4*w: 16*p + 4*w + 4], ad[2*h + p], mods=f"offset:{2304*w}" if w else "")
            for p in range(2):
                b = 16*p
                k.v_pk_add_f32(acc[b:b+2], acc[b:b+2], acc[b+4:b+6]); k.v_pk_add_f32(acc[b+2:b+4], acc[b+2:b+4], acc[b+6:b+8])
                k.v_pk_add_f32(acc[b+8:b+10], acc[b+8:b+10], acc[b+12:b+14]); k.v_pk_add_f32(acc[b+10:b+12], acc[b+10:b+12], acc[b+14:b+16])
                k.v_pk_add_f32(acc[b:b+2], acc[b:b+2], acc[b+8:b+10]); k.v_pk_add_f32(acc[b+2:b+4], acc[b+2:b+4], acc[b+10:b+12])
                k.v_cvt_pk_bf16_f32(kvA[h][2*p], acc[b], acc[b+1]); k.v_cvt_pk_bf16_f32(kvA[h][2*p+1], acc[b+2], acc[b+3])
        for h in range(2):
            k.v_mfma_f32_32x32x16_bf16(D_[h], kvA[h], pqF[4*h:4*h+4], 0)
        ob = sA[1]
        k.s_lshl_b32(ob, sI, 2); k.s_add_u32(ob, ob, sW); k.s_lshl_b32(ob, ob, 5); k.s_lshl_b32(sT[0], sJ, 1); k.s_add_u32(ob, ob, sT[0]); k.s_lshl_b32(ob, ob, 10)
        k.s_lshl_b32(sT[0], sL, 21); k.s_add_u32(ob, ob, sT[0]); k.s_add_u32(ob, ob, OB)
        for h in range(2):
            k.v_add_f32(t[0], 1e-6, D_[h][8])
            k.v_rcp_f32(t[0], t[0])
            for i in range(8): k.v_mul_f32(o[i], D_[h][i], t[0])
            for i in range(4): k.v_cvt_pk_bf16_f32(of[i], o[2*i], o[2*i+1])
            k.buffer_store_dwordx4(of, vL0, sWS, ob, mods=f"offen offset:{h*KB} sc1" if h else "offen sc1", tag="st")
        self.cnt_off(sCnt, C_RO, sI)
        self.arrive(sCnt)
        self.stamp()
        with self.if_wave({1,2,3}):
            k.s_sub_u32(sT[0], sW, 1)
            k.s_mul_i32(sT[1], sJ, 7); k.s_add_u32(sT[1], sT[1], sT[0]); k.s_lshl_b32(sT[1], sT[1], 15); k.s_add_u32(sT[1], sT[1], W13)
            k.s_lshl_b32(sT[2], sT[0], 15)
            self.dma(32, sT[1], sT[2], "dma13a")
        with self.if_wave({1}):
            k.s_lshl_b32(sT[1], sJ, 13); k.s_add_u32(sT[1], sT[1], W13E)
            k.s_mov_b32(sT[2], L_W13E)
            self.dma(7, sT[1], sT[2], "dma13a")
        self.wait(sCnt, 16)
        self.stamp()

    def tile_ids(self):
        k = self.k
        k.s_lshr_b32(sT[0], sJ, 3); k.s_lshl_b32(sT[0], sT[0], 1); k.s_lshl_b32(sT[1], sI, 2); k.s_add_u32(sT[0], sT[0], sT[1])
        k.s_lshr_b32(sT[1], sW, 1); k.s_add_u32(sA[8], sT[0], sT[1]); k.s_xor_b32(sT[1], sT[1], 1); k.s_add_u32(sA[9], sT[0], sT[1])
        k.s_and_b32(sT[0], sJ, 7); k.s_lshl_b32(sT[0], sT[0], 1); k.s_and_b32(sT[1], sW, 1)
        k.s_add_u32(sA[10], sT[0], sT[1]); k.s_xor_b32(sT[1], sT[1], 1); k.s_add_u32(sA[11], sT[0], sT[1])
    def res_loads(self, n_s, res):
        k = self.k
        k.s_lshl_b32(sT[0], n_s, 21); k.s_lshl_b32(sT[1], sA[8], 15); k.s_add_u32(sT[0], sT[0], sT[1])
        k.s_lshl_b32(sT[1], sA[10], 11); k.s_add_u32(sT[0], sT[0], sT[1]); k.s_add_u32(sT[0], sT[0], XB)
        k.buffer_load_dwordx4(res[0:4], vL0, sWS, sT[0], mods="offen sc1")
        k.buffer_load_dwordx4(res[4:8], vL0, sWS, sT[0], mods="offen offset:1024 sc1")
    def finish64(self, acc, res, nout_s, final_possible):
        k = self.k
        vw = V(200, 3); vr = V(203); rb = V(204, 48-0) if False else None
        for kk in range(1, 4):
            k.s_xor_b32(sT[0], sW, kk); k.s_mul_i32(sT[0], sT[0], 3); k.s_add_u32(sT[0], sT[0], kk-1); k.s_lshl_b32(sT[0], sT[0], 12); k.s_add_u32(sT[0], sT[0], L_RED)
            k.v_add_u32(vw[kk-1], sT[0], vL0)
        k.s_mul_i32(sT[0], sW, 3*4096); k.s_add_u32(sT[0], sT[0], L_RED)
        k.v_add_u32(vr, sT[0], vL0)
        for kk in range(1, 4):
            for q in range(4): k.ds_write_b128(vw[kk-1], acc[kk][4*q:4*q+4], mods=f"offset:{q*KB}" if q else "")
        k.s_waitcnt(mods="lgkmcnt(0)")
        k.s_barrier()
        for s in range(3):
            for q in range(4): k.ds_read_b128(acc[s+1][4*q:4*q+4], vr, mods=f"offset:{s*4096 + q*KB}" if (s or q) else "")
        f = acc[0]
        r16 = V(208, 16); tmp = V(224, 16); pk = V(240, 8); ms = V(248, 2)
        self.unpack(res, r16)
        for i in range(8): k.v_pk_add_f32(f[2*i:2*i+2], f[2*i:2*i+2], r16[2*i:2*i+2])
        for s in range(3):
            for i in range(8): k.v_pk_add_f32(f[2*i:2*i+2], f[2*i:2*i+2], acc[s+1][2*i:2*i+2])
        for i in range(8): k.v_cvt_pk_bf16_f32(pk[i], f[2*i], f[2*i+1])
        def inter():
            k.s_lshl_b32(sT[0], nout_s, 21); k.s_lshl_b32(sT[1], sA[8], 15); k.s_add_u32(sT[0], sT[0], sT[1])
            k.s_lshl_b32(sT[1], sA[10], 11); k.s_add_u32(sT[0], sT[0], sT[1]); k.s_add_u32(sT[0], sT[0], XB)
            self.s_stat_off(sT[1], nout_s, sA[8], sA[10], sT[2], None)
            self.unpack(pk, f)
            self.store_x_and_stats(pk, f, tmp, sT[0], sT[1], ms)
        if not final_possible:
            inter()
        else:
            with self.if_layer(0): inter()
            with self.if_layer(1):
                k.v_lshrrev_b32(tmp[0], 4, vM16); k.v_lshlrev_b32(tmp[0], 10, tmp[0])
                k.v_lshrrev_b32(tmp[1], 5, vLane); k.v_lshlrev_b32(tmp[1], 3, tmp[1]); k.v_add_u32(tmp[0], tmp[0], tmp[1])
                k.s_lshl_b32(sT[0], sA[8], 15); k.s_lshl_b32(sT[1], sA[10], 6); k.s_add_u32(sT[0], sT[0], sT[1])
                for g in range(4):
                    k.buffer_store_dwordx2(pk[2*g:2*g+2], tmp[0], sOUT, sT[0], mods=f"offen offset:{16*g}" if g else "offen")

    def p2b(self):
        k = self.k
        acc = [V(8 + 16*i, 16) for i in range(4)]; res = V(72, 8)
        self.tile_ids()
        h0 = sA[0]; h1 = sA[1]
        for hs, mb in ((h0, sA[8]), (h1, sA[9])):
            k.s_lshl_b32(hs, mb, 15); k.s_lshl_b32(sT[0], sW, 13); k.s_add_u32(hs, hs, sT[0])
            k.s_lshl_b32(sT[0], sL, 21); k.s_add_u32(hs, hs, sT[0]); k.s_add_u32(hs, hs, OB)
        for t in range(8):
            for ml, hs in enumerate((h0, h1)):
                im = (t % 4)*KB
                k.buffer_load_dwordx4(A(4*(ml*8 + t), 4), vL0, sWS, hs, mods=f"offen offset:{im} sc1" if im else "offen sc1")
            if t == 3:
                k.s_add_u32(h0, h0, 4*KB); k.s_add_u32(h1, h1, 4*KB)
        k.s_lshl_b32(sT[5], sL, 1)
        self.res_loads(sT[5], res)
        for t in range(8):
            for kk in range(4):
                ml, nl = kk >> 1, kk & 1
                k.v_mfma_f32_32x32x16_bf16(acc[kk], A(128 + 4*(nl*8 + t), 4), A(4*(ml*8 + t), 4), 0 if t == 0 else acc[kk])
        self.stamp()
        k.s_lshl_b32(sT[5], sL, 1); k.s_add_u32(sA[2], sT[5], 1)
        self.finish64(acc, res, sA[2], False)
        self.cnt_off(sCnt, C_RX1, sI)
        self.arrive(sCnt)
        self.stamp()
        with self.if_wave({1,2,3}):
            self.w2a_loads()
        self.wait(sCnt, 16)
        self.stamp()

    def w2_base(self, dst, nl):
        k = self.k
        k.s_mul_i32(dst, sA[10 + nl], 112*KB); k.s_mul_i32(sT[0], sW, 28*KB); k.s_add_u32(dst, dst, sT[0]); k.s_add_u32(dst, dst, W2)
    def w2a_loads(self):
        k = self.k
        for nl in range(2):
            self.w2_base(sT[1], nl)
            for jj in range(4):
                for b in range(4):
                    k.buffer_load_dwordx4(A(128 + 4*(nl*16 + jj*4 + b), 4), vL0, sWS, sT[1], mods=f"offen offset:{b*KB} sc1" if b else "offen sc1", tag="w2a")
                if jj < 3: k.s_add_u32(sT[1], sT[1], 7*KB)

    def silu_epi(self, acc, b, c1, c2, t, hp, hs):
        k = self.k
        G = acc[0:8]; U = acc[8:16]
        for i in range(8): k.v_mul_f32(t[i], G[i], c1)
        for i in range(8): k.v_exp_f32(t[i], t[i])
        for i in range(8): k.v_mul_f32(U[i], G[i], U[i])
        for i in range(8): k.v_add_f32(t[i], 1.0, t[i])
        for i in range(8): k.v_rcp_f32(t[i], t[i])
        for i in range(8): k.v_mul_f32(U[i], U[i], c2)
        for i in range(8): k.v_mul_f32(U[i], U[i], t[i])
        for i in range(4): k.v_cvt_pk_bf16_f32(hp[i], U[2*i], U[2*i+1])
        grp, im = divmod(b, 4)
        if b == 4: k.s_add_u32(hs, hs, 4*KB)
        k.buffer_store_dwordx4(hp, vL0, sWS, hs, mods=f"offen offset:{im*KB} sc1" if im else "offen sc1", tag=f"hst{b}")

    def p3(self):
        k = self.k
        st = V(8, 16); acc = [V(24 + 16*i, 16) for i in range(3)]
        wb = [V(72 + 4*i, 4) for i in range(6)]
        xext = V(96, 4); mean = V(100); rstd = V(101); t4 = V(102, 4); c1 = V(106); c2 = V(107)
        et = V(108, 8); hp = [V(116, 4), V(120, 4)]
        k.s_lshl_b32(sT[5], sL, 1); k.s_add_u32(sT[5], sT[5], 1)
        self.load_x(sT[5], st)
        def dma_blk(b):
            k.s_mul_i32(sT[1], sJ, 7); k.s_add_u32(sT[1], sT[1], b); k.s_lshl_b32(sT[1], sT[1], 15)
            k.s_lshl_b32(sT[2], sW, 13); k.s_add_u32(sT[1], sT[1], sT[2]); k.s_add_u32(sT[1], sT[1], W13)
            k.s_add_u32(sT[2], sT[2], (b % 4)*L_SLOT)
            self.dma(8, sT[1], sT[2], f"dma13_{b}")
        dma_blk(3)
        with self.if_wave({0}):
            self.w2a_loads()
        hs = sA[3]
        k.s_lshl_b32(hs, sI, 2); k.s_add_u32(hs, hs, sW); k.s_mul_i32(hs, hs, 112*KB)
        k.s_mul_i32(sT[0], sJ, 7*KB); k.s_add_u32(hs, hs, sT[0]); k.s_mul_i32(sT[0], sL, 7*1024*KB); k.s_add_u32(hs, hs, sT[0]); k.s_add_u32(hs, hs, HB_)
        k.waittag("dma13a")
        with k.capture() as fl0:
            self.ln_stats(st, mean, rstd, xext, t4)
            k.v_mul_f32(c1, -self.LOG2E, rstd)
            k.v_mul_f32(c2, rstd, rstd)
        uses = []
        for t in range(32):
            uses.append((0, t)); uses.append((1, t))
        uses.append((0, 32)); uses.append((1, 32))
        for b in range(2, 7):
            for t in range(33): uses.append((b, t))
        def off(b, t): return (L_W13E + b*KB) if t == 32 else ((b % 4)*L_SLOT + t*KB)
        D = 4
        n0 = 66
        starts = {b: n0 + 33*(b-2) for b in range(2, 7)}
        for u in range(D): self.ds_frag(wb[u % 6], off(*uses[u]))
        epi = {}
        for b in range(7):
            with k.capture() as e: self.silu_epi(acc[b % 3], b, c1, c2, et, hp[b % 2], hs)
            epi[b] = e
        actions = {}
        def add_action(u, fn): actions.setdefault(u, []).append(fn)
        def bar(tags):
            def f():
                if tags: k.waittag(*tags)
                k.s_barrier()
            return f
        add_action(n0 - 1, lambda: (k.s_waitcnt(mods="lgkmcnt(%d)" % D) if False else None))
        add_action(n0 - 1, bar(None)); add_action(n0 - 1, lambda: dma_blk(4)); add_action(n0 - 1, lambda: dma_blk(5))
        add_action(starts[3] - D - 1, bar(["dma13_3"]))
        add_action(starts[4] - D - 1, bar(["dma13_4"])); add_action(starts[4] - D - 1, lambda: dma_blk(6))
        add_action(starts[5] - D - 1, bar(["dma13_5"]))
        def ha():
            k.waittag("dma13_6", "hst0", "hst1", "hst2", "hst3")
            k.s_barrier()
            self.cnt_off(sCnt, C_RHA, sI)
            with self.if_wave({0}):
                k.s_mov_b64(exec_, 1)
                k.buffer_atomic_add(vOne, "off", sWS, sCnt)
                k.s_mov_b64(exec_, -1)
        add_action(starts[6] - D - 1, ha)
        fillers = {}
        def segment(lo, hi, fill, start, per):
            slots = []
            for u in range(lo, hi):
                b, t = uses[u]
                with k.capture() as s:
                    xa = A(4*t, 4) if t < 32 else xext
                    k.v_mfma_f32_32x32x16_bf16(acc[b % 3], wb[u % 6], xa, 0 if t == 0 else acc[b % 3])
                    if u + D < len(uses): self.ds_frag(wb[(u + D) % 6], off(*uses[u + D]))
                    for fn in actions.get(u, []): fn()
                slots.append(s)
            self.weave(slots, fill, start=start, per=per)
        fine = self.o.get("fine")
        segment(0, n0, fl0, 6, 2)
        if fine: self.stamp()
        segment(starts[2], starts[3], epi[0] + epi[1], 1, 4)
        if fine: self.stamp()
        segment(starts[3], starts[4], epi[2], 1, 2)
        if fine: self.stamp()
        segment(starts[4], starts[5], epi[3], 1, 2)
        if fine: self.stamp()
        segment(starts[5], starts[6], epi[4], 1, 2)
        if fine: self.stamp()
        segment(starts[6], len(uses), epi[5], 1, 2)
        self.stamp()
        k.put(epi[6])
        self.cnt_off(sCnt, C_RHB, sI)
        self.arrive(sCnt)
        self.stamp()

    def p4(self):
        k = self.k
        acc = [V(8 + 16*i, 16) for i in range(4)]; res = V(72, 8)
        w2b = V(80, 96)
        self.tile_ids()
        h0 = sA[0]; h1 = sA[1]
        def hbase():
            for hs, mb in ((h0, sA[8]), (h1, sA[9])):
                k.s_mul_i32(hs, mb, 112*KB); k.s_mul_i32(sT[0], sW, 28*KB); k.s_add_u32(hs, hs, sT[0])
                k.s_mul_i32(sT[0], sL, 7*1024*KB); k.s_add_u32(hs, hs, sT[0]); k.s_add_u32(hs, hs, HB_)
        hbase()
        self.cnt_off(sCnt, C_RHA, sI)
        self.wait(sCnt, 16)
        self.stamp()
        for jj in range(4):
            for b in range(4):
                for ml, hs in enumerate((h0, h1)):
                    k.buffer_load_dwordx4(A(4*(ml*16 + jj*4 + b), 4), vL0, sWS, hs, mods=f"offen offset:{b*KB} sc1" if b else "offen sc1")
            if jj < 3:
                k.s_add_u32(h0, h0, 7*KB); k.s_add_u32(h1, h1, 7*KB)
        for nl in range(2):
            self.w2_base(sT[1], nl)
            k.s_add_u32(sT[1], sT[1], 4*KB)
            for jj in range(4):
                for b in range(3):
                    r = 4*(nl*12 + jj*3 + b)
                    k.buffer_load_dwordx4(w2b[r:r+4], vL0, sWS, sT[1], mods=f"offen offset:{b*KB} sc1" if b else "offen sc1")
                if jj < 3: k.s_add_u32(sT[1], sT[1], 7*KB)
        k.s_lshl_b32(sT[5], sL, 1); k.s_add_u32(sT[5], sT[5], 1)
        self.res_loads(sT[5], res)
        first = True
        for jj in range(4):
            for b in range(4):
                for kk in range(4):
                    ml, nl = kk >> 1, kk & 1
                    k.v_mfma_f32_32x32x16_bf16(acc[kk], A(128 + 4*(nl*16 + jj*4 + b), 4), A(4*(ml*16 + jj*4 + b), 4), 0 if first else acc[kk])
                first = False
        hbase()
        k.s_add_u32(h0, h0, 4*KB); k.s_add_u32(h1, h1, 4*KB)
        self.cnt_off(sCnt, C_RHB, sI)
        self.wait(sCnt, 16)
        self.stamp()
        for jj in range(4):
            for b in range(3):
                for ml, hs in enumerate((h0, h1)):
                    k.buffer_load_dwordx4(A(4*(ml*12 + jj*3 + b), 4), vL0, sWS, hs, mods=f"offen offset:{b*KB} sc1" if b else "offen sc1")
            if jj < 3:
                k.s_add_u32(h0, h0, 7*KB); k.s_add_u32(h1, h1, 7*KB)
        for jj in range(4):
            for b in range(3):
                for kk in range(4):
                    ml, nl = kk >> 1, kk & 1
                    r = 4*(nl*12 + jj*3 + b)
                    k.v_mfma_f32_32x32x16_bf16(acc[kk], w2b[r:r+4], A(4*(ml*12 + jj*3 + b), 4), acc[kk])
        self.stamp()
        k.s_lshl_b32(sT[5], sL, 1); k.s_add_u32(sA[2], sT[5], 2)
        self.finish64(acc, res, sA[2], True)
        with self.if_layer(0):
            self.cnt_off(sCnt, C_RX2, sI)
            self.arrive(sCnt)
            self.stamp()
            self.dma_wq()
            self.wait(sCnt, 16)
            self.stamp()

    def build(self):
        k = self.k
        if self.stamps:
            k.s_mov_b32(S(82), 0)
            k.v_mov_b32(V(255), 0); k.v_mov_b32(V(254), 0)
        self.stamp()
        self.prologue()
        self.stamp()
        self.p0()
        self.stamp()
        phases = [self.p1, self.attn_o, self.p2b, self.p3, self.p4]
        k.label("L_layer")
        n = 0
        for ph in phases:
            ph()
            n += 1
            if self.stop_after is not None and self.stop_after % 5 == n % 5:
                lay = (self.stop_after - 1) // 5
                lab = k.label_name("cont")
                k.s_cmp_eq_u32(sL, lay); k.s_cbranch_scc1("L_fin")
        k.s_add_u32(sL, sL, 1)
        k.s_cmp_lt_u32(sL, 2)
        k.s_cbranch_scc1("L_layer")
        k.label("L_loop_end")
        k.label("L_fin")
        with self.if_wave({0}):
            k.s_mov_b64(exec_, 1)
            k.v_mov_b32(vTmp, sErr)
            k.s_cmp_lg_u32(sErr, 0)
            lab = k.label_name("noerr")
            k.s_cbranch_scc0(lab)
            k.buffer_store_dword(vTmp, "off", sDBG, 0, mods="offset:4")
            k.label(lab)
            k.s_mov_b64(exec_, -1)
        if self.stamps:
            self.stamp()
            k.s_lshl_b32(sT[0], S(2), 2); k.s_add_u32(sT[0], sT[0], sW); k.s_lshl_b32(sT[0], sT[0], 8); k.s_add_u32(sT[0], sT[0], STAMP)
            k.v_lshlrev_b32(vTmp, 2, vLane)
            k.buffer_store_dword(V(255), vTmp, sWS, sT[0], mods="offen")
            k.s_add_u32(sT[0], sT[0], 0x80000)
            k.buffer_store_dword(V(254), vTmp, sWS, sT[0], mods="offen")
        k.s_waitcnt(mods="vmcnt(0)")
        k.label("L_end")
        k.s_endpgm()

def generate(path, **kw):
    g = Gen(**kw)
    g.build()
    cfgs = []
    for w in range(4):
        for nf, ext, uA in ((8, True, True), (8, True, False), (8, False, False), (7, False, False)):
            for wg0 in ((True, False) if w == 0 else (False,)):
                cfgs.append(dict(w=w, nf=nf, ext=ext, uA=uA, wg0=wg0))
    lines = finalize(g.k, cfgs, loop=("L_layer", "L_loop_end", [dict(L=0), dict(L=1)]))
    hdr = f"""; Fused persistent kernel: 2 x (linear attention block + SwiGLU block), generated by my own generator script.
; @launch grid=(256,1,1) block=(256,1,1) lds={LDS_BYTES}
.amdgcn_target "amdgcn-amd-amdhsa--gfx950"
.text
.globl {NAME}
.p2align 8
.type {NAME},@function
{NAME}:
"""
    ftr = f"""
.section .rodata,"a"
.p2align 6
.amdhsa_kernel {NAME}
  .amdhsa_next_free_vgpr 512
  .amdhsa_next_free_sgpr 102
  .amdhsa_accum_offset 256
  .amdhsa_group_segment_fixed_size 0
  .amdhsa_kernarg_size 80
  .amdhsa_user_sgpr_count 2
  .amdhsa_user_sgpr_kernarg_segment_ptr 1
  .amdhsa_system_sgpr_workgroup_id_x 1
  .amdhsa_float_denorm_mode_32 3
.end_amdhsa_kernel
"""
    open(path, "w").write(hdr + "\n".join(lines) + ftr)
    return lines

if __name__ == "__main__":
    import argparse
    ap = argparse.ArgumentParser()
    ap.add_argument("-o", default="out.s")
    ap.add_argument("--stop", type=int, default=None)
    ap.add_argument("--stamps", action="store_true")
    ap.add_argument("--opt", action="append", default=[])
    a = ap.parse_args()
    opts = {}
    for o in a.opt:
        kk, _, vv = o.partition("=")
        opts[kk] = (int(vv) if vv.lstrip("-").isdigit() else vv) if vv else True
    l = generate(a.o, stop_after=a.stop, stamps=a.stamps, opts=opts)
    print(len(l), "lines")
```

```python
import sys
from fw import *

NAME = "interleave_layers__linear_attn_block__glu_gated_swiglu__prompt_kernel"
KB = 1024
CNT   = 0x0000000
WQ    = 0x0100000; WQE = 0x0280000
WO    = 0x0300000
W13   = 0x0400000; W13E = 0x0780000
W2    = 0x0800000
XB    = 0x0A00000
SB    = 0x1200000
OB    = 0x1300000
KVP   = 0x1700000
HB_   = 0x1900000
STAMP = 0x3000000
C_H0R = 0; C_H0C = 16
def C_COL(L): return 32 + 96*L
def C_RO(L):  return 32 + 96*L + 16
def C_RX1(L): return 32 + 96*L + 32
def C_RHA(L): return 32 + 96*L + 48
def C_RHB(L): return 32 + 96*L + 64
def C_RX2(L): return 32 + 96*L + 80
NCNT = 32 + 192
L_SLOT = 32*KB
L_RED  = 96*KB
L_KVS  = 100*KB
L_WQE  = 144*KB
L_MISC = 148*KB
L_W13E = 152*KB
LDS_BYTES = 160*KB
sWS = S(4,4); sOUT = S(8,4); sXR = S(12,4)
sI = S(16); sJ = S(17); sW = S(18); sL = S(19)
sT = [S(20+i) for i in range(12)]
sP = S(32,20)
sDBG = S(52,4)
sSpin = S(56); sErr = S(57); sCnt = S(58); sTgt = S(59)
sUP16 = S(60,2); sHI = S(62,2); sLO16R = S(64,2)
sA = [S(66+i) for i in range(14)]
sSt = S(80,20)
vL0 = V(0); vL1 = V(1); vL2 = V(2); vLane = V(3); vOne = V(4); vTmp = V(5); vTmp2 = V(6); vM16 = V(7)

class Gen:
    def __init__(self, stop_after=None, stamps=False, opts=None):
        self.k = K()
        self.stop_after = stop_after
        self.stamps = stamps
        self.nst = 0
        self.o = dict(opts or {})
    def if_wave(self, waves):
        k = self.k
        waves = set(waves)
        def test():
            if len(waves) == 1: k.s_cmp_eq_u32(sW, list(waves)[0])
            elif waves == {1,2,3}: k.s_cmp_lg_u32(sW, 0)
            elif waves == {0,1}: k.s_cmp_lt_u32(sW, 2)
            else: raise ValueError(waves)
        return k.when("w", waves, test, "s_cbranch_scc0")
    def if_layer(self, L):
        k = self.k
        return k.when("L", {L}, lambda: k.s_cmp_eq_u32(sL, L), "s_cbranch_scc0")
    def stamp(self, name=""):
        if not self.stamps: return
        k = self.k
        k.s_memrealtime(S(80, 2))
        k.s_memtime(S(84, 2))
        k.s_waitcnt(mods="lgkmcnt(0)")
        k.s_mov_b32(m0, S(82))
        k.s_nop(0)
        k.v_writelane_b32(V(255), S(80), m0)
        k.v_writelane_b32(V(254), S(84), m0)
        k.s_add_u32(S(82), S(82), 1)
    def cnt_off(self, dst, cidx_fn, grp):
        k = self.k
        c0, c1 = cidx_fn(0), cidx_fn(1)
        k.s_mul_i32(dst, sL, (c1-c0)*256)
        k.s_lshl_b32(sT[11], grp, 8)
        k.s_add_u32(dst, dst, sT[11])
        if c0: k.s_add_u32(dst, dst, c0*256)
    def arrive(self, cnt, wait_stores=True):
        k = self.k
        if wait_stores: k.s_waitcnt(mods="vmcnt(0) lgkmcnt(0)")
        k.s_barrier()
        with self.if_wave({0}):
            k.s_mov_b64(exec_, 1)
            k.buffer_atomic_add(vOne, "off", sWS, cnt)
            k.s_mov_b64(exec_, -1)
    def poll(self, cnt, target):
        k = self.k
        lp = k.label_name("poll"); done = k.label_name("got")
        k.s_mov_b64(exec_, 1)
        k.s_mov_b32(sSpin, 0)
        k.label(lp)
        k.buffer_load_dword(vTmp, "off", sWS, cnt, mods="sc1")
        k.s_add_u32(sSpin, sSpin, 1)
        k.s_waitcnt(mods="vmcnt(0)")
        k.v_readfirstlane_b32(sT[10], vTmp)
        k.s_cmp_ge_u32(sT[10], target)
        k.s_cbranch_scc1(done)
        k.s_cmp_lt_u32(sSpin, 0x40000)
        k.s_cbranch_scc1(lp)
        k.s_mov_b32(sErr, 1)
        k.label(done)
        k.s_mov_b64(exec_, -1)
    def wait(self, cnt, target=16):
        with self.if_wave({0}):
            self.poll(cnt, target)
        self.k.s_barrier()
    def frag_loads(self, dst_fn, n, soff, stride=KB, tag=None, tmp=None, lds=False):
        k = self.k
        per = 4 if stride == KB else 1
        for t in range(n):
            im = (t % per) * KB
            k.buffer_load_dwordx4(dst_fn(t), vL0, sWS, soff, mods=f"offen offset:{im} sc1" if im else "offen sc1", tag=tag)
            if (t % per) == per-1 and t != n-1:
                k.s_add_u32(soff, soff, per*stride)
    def dma(self, n, soff, ldsoff, tag):
        k = self.k
        for t in range(n):
            im = (t % 4) * KB
            if t % 4 == 0:
                k.s_mov_b32(m0, ldsoff)
            k.buffer_load_dwordx4(vL0, sWS, soff, mods=(f"offen offset:{im} sc1 lds" if im else "offen sc1 lds"), tag=tag)
            if t % 4 == 3 and t != n-1:
                k.s_add_u32(soff, soff, 4*KB)
                k.s_add_u32(ldsoff, ldsoff, 4*KB)
    def cross_half_add(self, x, t):
        k = self.k
        k.v_mov_b32(t, x)
        k.v_permlane32_swap_b32(x, t)
        k.v_add_f32(x, x, t)
    def block_stats(self, f, tmp, mean, m2):
        k = self.k
        t = tmp
        for i in range(4): k.v_pk_add_f32(t[2*i:2*i+2], f[4*i:4*i+2], f[4*i+2:4*i+4])
        k.v_pk_add_f32(t[0:2], t[0:2], t[2:4]); k.v_pk_add_f32(t[4:6], t[4:6], t[6:8])
        k.v_pk_add_f32(t[0:2], t[0:2], t[4:6])
        k.v_add_f32(mean, t[0], t[1])
        self.cross_half_add(mean, t[2])
        k.v_mul_f32(mean, 1.0/32, mean)
        for i in range(8):
            k.v_pk_add_f32(t[2*i:2*i+2], f[2*i:2*i+2], R("v", mean.i, 2) if False else V(mean.i, 2), mods="op_sel_hi:[1,0] neg_lo:[0,1] neg_hi:[0,1]")
        k.v_pk_mul_f32(f[0:2] if False else t[0:2], t[0:2], t[0:2])
        for i in range(1, 8):
            k.v_pk_fma_f32(t[0:2], t[2*i:2*i+2], t[2*i:2*i+2], t[0:2])
        k.v_add_f32(m2, t[0], t[1])
        self.cross_half_add(m2, t[2])
    def unpack(self, d, f):
        k = self.k
        for i in range(d.n):
            k.v_lshlrev_b32(f[2*i], 16, d[i])
            k.v_and_b32(f[2*i+1], 0xffff0000, d[i])
    def store_x_and_stats(self, pk, f, tmp, sX, sS, ms):
        k = self.k
        k.buffer_store_dwordx4(pk[0:4], vL0, sWS, sX, mods="offen sc1", tag="st")
        k.buffer_store_dwordx4(pk[4:8], vL0, sWS, sX, mods="offen offset:1024 sc1", tag="st")
        self.block_stats(f, tmp, ms[0], ms[1])
        k.buffer_store_dwordx2(ms, vM16, sWS, sS, mods="offen sc1", tag="st")
    def s_stat_off(self, dst, n_expr_s, mb, nb32, t0, t1):
        k = self.k
        k.s_lshl_b32(dst, n_expr_s, 18)
        k.s_lshl_b32(t0, mb, 12); k.s_add_u32(dst, dst, t0)
        k.s_lshr_b32(t0, nb32, 1); k.s_and_b32(t0, t0, 3); k.s_lshl_b32(t0, t0, 10); k.s_add_u32(dst, dst, t0)
        k.s_lshr_b32(t0, nb32, 3); k.s_lshl_b32(t0, t0, 9); k.s_add_u32(dst, dst, t0)
        k.s_and_b32(t0, nb32, 1); k.s_lshl_b32(t0, t0, 3); k.s_add_u32(dst, dst, t0)
        k.s_add_u32(dst, dst, SB)

    def prologue(self):
        k = self.k
        k.s_cmp_ge_u32(S(2), 256)
        k.s_cbranch_scc1("L_end")
        k.s_load_dwordx16(sP[0:16], S(0,2), 0)
        k.s_load_dwordx4(sP[16:20], S(0,2), 64)
        k.v_and_b32(vLane, 63, V(0))
        k.v_lshrrev_b32(vTmp, 6, V(0))
        k.v_readfirstlane_b32(sW, vTmp)
        k.s_and_b32(sT[0], S(2), 7); k.s_lshr_b32(sT[1], S(2), 3)
        mp = self.o.get("map", "C")
        if mp == "A":
            k.s_lshr_b32(sT[2], sT[1], 4); k.s_lshl_b32(sT[2], sT[2], 3)
            k.s_add_u32(sI, sT[0], sT[2]); k.s_and_b32(sJ, sT[1], 15)
        elif mp == "B":
            k.s_lshr_b32(sT[2], sT[0], 1); k.s_lshl_b32(sT[2], sT[2], 2); k.s_lshr_b32(sT[3], sT[1], 3); k.s_add_u32(sI, sT[2], sT[3])
            k.s_and_b32(sT[2], sT[0], 1); k.s_lshl_b32(sT[2], sT[2], 3); k.s_and_b32(sT[3], sT[1], 7); k.s_add_u32(sJ, sT[2], sT[3])
        else:
            k.s_lshr_b32(sT[2], sT[0], 2); k.s_lshl_b32(sT[2], sT[2], 3); k.s_lshr_b32(sT[3], sT[1], 2); k.s_add_u32(sI, sT[2], sT[3])
            k.s_and_b32(sT[2], sT[0], 3); k.s_lshl_b32(sT[2], sT[2], 2); k.s_and_b32(sT[3], sT[1], 3); k.s_add_u32(sJ, sT[2], sT[3])
        k.s_mov_b32(sL, 0); k.s_mov_b32(sErr, 0)
        k.v_lshlrev_b32(vL0, 4, vLane)
        k.v_add_u32(vL1, 0x10000, vL0)
        k.v_add_u32(vL2, 0x20000, vL0)
        k.v_mov_b32(vOne, 1)
        k.v_and_b32(vM16, 31, vLane); k.v_lshlrev_b32(vM16, 4, vM16)
        k.s_mov_b32(sUP16[0], 0xffff0000); k.s_mov_b32(sUP16[1], 0xffff0000)
        k.s_mov_b32(sHI[0], 0); k.s_mov_b32(sHI[1], -1)
        k.s_waitcnt(mods="lgkmcnt(0)")
        for srd, p, n in ((sWS, sP[18:20], 0x10000000), (sOUT, sP[14:16], 2*1024*1024), (sXR, sP[0:2], 2*1024*1024), (sDBG, sP[16:18], 256)):
            k.s_mov_b32(srd[0], p[0]); k.s_mov_b32(srd[1], p[1]); k.s_mov_b32(srd[2], n); k.s_mov_b32(srd[3], 0x20000)

    def p0(self):
        k = self.k
        with k.when("wg0", {True}, lambda: (k.s_or_b32(sT[0], S(2), sW), k.s_cmp_eq_u32(sT[0], 0)), "s_cbranch_scc0"):
            k.v_lshlrev_b32(vTmp, 8, vLane)
            k.v_mov_b32(vTmp2, 0)
            for c in range(4):
                k.s_mov_b32(sT[1], CNT + c*64*256)
                k.buffer_store_dword(vTmp2, vTmp, sWS, sT[1], mods="offen sc1")
            k.s_waitcnt(mods="vmcnt(0)")
            k.s_mov_b64(exec_, 1)
            k.buffer_store_dword(vOne, "off", sDBG, 0, mods="sc1")
            k.s_mov_b64(exec_, -1)
        xr = V(8, 8)
        mb = sA[0]; nb = sA[1]
        k.s_lshr_b32(sT[0], sJ, 2); k.s_lshl_b32(mb, sI, 2); k.s_add_u32(mb, mb, sT[0])
        k.s_and_b32(sT[0], sJ, 3); k.s_lshl_b32(nb, sT[0], 2); k.s_add_u32(nb, nb, sW)
        va = V(16)
        k.v_and_b32(va, 31, vLane); k.v_lshlrev_b32(va, 10, va)
        k.v_lshrrev_b32(vTmp, 5, vLane); k.v_lshlrev_b32(vTmp, 3, vTmp); k.v_add_u32(va, va, vTmp)
        k.s_lshl_b32(sT[0], mb, 15); k.s_lshl_b32(sT[1], nb, 6); k.s_add_u32(sT[0], sT[0], sT[1])
        for q in range(4):
            k.buffer_load_dwordx2(xr[2*q:2*q+2], va, sXR, sT[0], mods=f"offen offset:{16*q}" if q else "offen")
        u = sI; j = sJ
        b0 = sA[2]; b0h = sA[3]; b1 = sA[4]; b1h = sA[5]; pitch = sA[6]; col0 = sA[7]; krow = sA[8]; dst = sA[9]; ext = sA[10]; ccm = sA[11]; nf = sA[12]
        t0, t1, t2 = sT[0], sT[1], sT[2]
        lA = k.label_name("uA"); lB = k.label_name("uB"); lC = k.label_name("uC"); lD = k.label_name("uD"); lE = k.label_name("uE")
        k.s_mov_b32(ccm, 31); k.s_mov_b32(nf, 8); k.s_mov_b32(krow, 0); k.s_mov_b32(ext, 0)
        k.s_cmp_lt_u32(u, 3); k.s_cbranch_scc1(lA)
        k.s_cmp_lt_u32(u, 10); k.s_cbranch_scc1(lB)
        k.s_cmp_lt_u32(u, 12); k.s_cbranch_scc1(lC)
        k.s_mov_b32(b0, sP[12]); k.s_mov_b32(b0h, sP[13]); k.s_mov_b32(pitch, 1024)
        k.s_lshl_b32(col0, j, 5); k.s_sub_u32(t0, u, 12); k.s_mul_i32(krow, t0, 448)
        k.s_mul_i32(dst, j, 112*KB); k.s_mul_i32(t0, t0, 28*KB); k.s_add_u32(dst, dst, t0); k.s_add_u32(dst, dst, W2)
        k.s_mov_b32(nf, 7)
        k.s_mov_b32(b1, b0); k.s_mov_b32(b1h, b0h)
        k.s_branch(lE)
        k.label(lA)
        k.s_mov_b32(b0, sP[2]); k.s_mov_b32(b0h, sP[3]); k.s_mov_b32(pitch, 3072)
        k.s_lshl_b32(col0, u, 9); k.s_lshl_b32(t0, j, 5); k.s_add_u32(col0, col0, t0)
        k.s_mul_i32(t0, j, 3); k.s_add_u32(t0, t0, u); k.s_lshl_b32(dst, t0, 15); k.s_add_u32(dst, dst, WQ)
        k.s_lshl_b32(t0, j, 2); k.s_add_u32(t0, t0, u); k.s_lshl_b32(ext, t0, 10); k.s_add_u32(ext, ext, WQE)
        k.s_mov_b32(b1, b0); k.s_mov_b32(b1h, b0h)
        k.s_branch(lE)
        k.label(lB)
        k.s_mov_b32(b0, sP[8]); k.s_mov_b32(b0h, sP[9]); k.s_mov_b32(b1, sP[10]); k.s_mov_b32(b1h, sP[11]); k.s_mov_b32(pitch, 3584)
        k.s_sub_u32(t1, u, 3); k.s_mul_i32(t0, j, 7); k.s_add_u32(t0, t0, t1)
        k.s_lshl_b32(col0, t0, 4)
        k.s_lshl_b32(dst, t0, 15); k.s_add_u32(dst, dst, W13)
        k.s_lshl_b32(t0, j, 3); k.s_add_u32(t0, t0, t1); k.s_lshl_b32(ext, t0, 10); k.s_add_u32(ext, ext, W13E)
        k.s_mov_b32(ccm, 15)
        k.s_branch(lE)
        k.label(lC)
        k.s_mov_b32(b0, sP[4]); k.s_mov_b32(b0h, sP[5]); k.s_mov_b32(pitch, 1024)
        k.s_sub_u32(t1, u, 10); k.s_and_b32(t0, j, 7); k.s_lshl_b32(t0, t0, 1); k.s_add_u32(t0, t0, t1); k.s_lshl_b32(col0, t0, 5)
        k.s_lshl_b32(t0, j, 1); k.s_add_u32(t0, t0, t1); k.s_lshl_b32(dst, t0, 15); k.s_add_u32(dst, dst, WO)
        k.s_mov_b32(b1, b0); k.s_mov_b32(b1h, b0h)
        k.label(lE)
        k.s_mul_i32(t0, sW, nf); k.s_lshl_b32(t1, t0, 4); k.s_add_u32(krow, krow, t1)
        k.s_lshl_b32(t0, t0, 10); k.s_add_u32(dst, dst, t0)
        ad = V(18, 2); c = V(20); cc = V(21)
        k.v_and_b32(c, 31, vLane)
        k.v_and_b32(cc, ccm, c)
        k.v_add_u32(cc, col0, cc); k.v_lshlrev_b32(cc, 1, cc)
        k.v_lshrrev_b32(vTmp, 5, vLane); k.v_lshlrev_b32(vTmp, 2, vTmp); k.v_add_u32(vTmp, krow, vTmp)
        k.v_mul_lo_u32(vTmp, vTmp, pitch); k.v_add_u32(cc, cc, vTmp)
        k.v_mov_b32(ad[0], b0); k.v_mov_b32(ad[1], b0h)
        k.v_mov_b32(vTmp, b1); k.v_mov_b32(vTmp2, b1h)
        k.v_cndmask_b32(ad[0], ad[0], vTmp, sUP16); k.v_cndmask_b32(ad[1], ad[1], vTmp2, sUP16)
        o64 = V(22, 2)
        k.v_mov_b32(o64[1], 0); k.v_mov_b32(o64[0], cc)
        k.v_lshl_add_u64(ad, o64, 0, ad)
        p1 = S(80, 2) if False else R("s", 94, 2); p5 = R("s", 96, 2)
        k.s_mov_b32(p1[0], pitch); k.s_mov_b32(p1[1], 0); k.s_mul_i32(p5[0], pitch, 5); k.s_mov_b32(p5[1], 0)
        U = V(24, 32); UR = V(100, 64)
        def frag(f):
            for j8 in range(8):
                k.emit("global_load_ushort", UR[8*f + j8], ad, "off", tag="u")
                if not (f == 7 and j8 == 7):
                    k.v_lshl_add_u64(ad, ad, 0, p5 if (j8 & 3) == 3 else p1)
        def pack(f):
            for d in range(4): k.v_lshl_or_b32(U[4*f + d], UR[8*f + 2*d + 1], 16, UR[8*f + 2*d])
        for f in range(7): frag(f)
        with k.when("nf", {8}, lambda: k.s_cmp_eq_u32(nf, 8), "s_cbranch_scc0"):
            frag(7)
        f = V(56, 16); tmp = V(72, 16); ms = V(88, 2)
        self.unpack(xr, f)
        k.s_lshl_b32(sT[0], mb, 15); k.s_lshl_b32(sT[1], nb, 11); k.s_add_u32(sT[0], sT[0], sT[1]); k.s_add_u32(sT[0], sT[0], XB)
        k.s_mov_b32(sT[3], 0)
        self.s_stat_off(sT[1], sT[3], mb, nb, sT[2], None)
        self.store_x_and_stats(xr, f, tmp, sT[0], sT[1], ms)
        for fi in range(7):
            pack(fi)
            k.buffer_store_dwordx4(U[4*fi:4*fi+4], vL0, sWS, dst, mods=f"offen offset:{(fi%4)*KB} sc1" if fi % 4 else "offen sc1", tag="st")
            if fi == 3: k.s_add_u32(dst, dst, 4*KB)
        with k.when("nf", {8}, lambda: k.s_cmp_eq_u32(nf, 8), "s_cbranch_scc0"):
            pack(7)
            k.buffer_store_dwordx4(U[28:32], vL0, sWS, dst, mods=f"offen offset:{3*KB} sc1", tag="st")
        with k.when("ext", {True}, lambda: k.s_cmp_lg_u32(ext, 0), "s_cbranch_scc0"):
            acc = V(56, 2); t = V(58, 2)
            k.v_mov_b32(acc[0], 0); k.v_mov_b32(acc[1], 0)
            for i in range(32):
                k.v_lshlrev_b32(t[0], 16, U[i]); k.v_and_b32(t[1], 0xffff0000, U[i])
                k.v_pk_add_f32(acc, acc, t)
            k.v_add_f32(acc[0], acc[0], acc[1])
            self.cross_half_add(acc[0], t[0])
            k.v_and_b32(t[0], 31, vLane); k.v_lshlrev_b32(t[0], 2, t[0])
            k.s_lshl_b32(sT[0], sW, 7); k.s_add_u32(sT[0], sT[0], L_MISC)
            k.v_add_u32(t[1], sT[0], t[0])
            k.ds_write_b32(t[1], acc[0])
            k.s_waitcnt(mods="lgkmcnt(0)")
            k.s_barrier()
            with self.if_wave({0}):
                k.v_add_u32(t[0], L_MISC, t[0])
                r4 = V(60, 4)
                for w in range(4): k.ds_read_b32(r4[w], t[0], mods=f"offset:{128*w}" if w else "")
                k.v_add_f32(r4[0], r4[0], r4[1]); k.v_add_f32(r4[2], r4[2], r4[3]); k.v_add_f32(r4[0], r4[0], r4[2])
                e = V(64, 4)
                k.v_cvt_pk_bf16_f32(e[0], r4[0], r4[0])
                k.v_lshlrev_b32(r4[1], 16, e[0])
                k.v_sub_f32(r4[1], r4[0], r4[1])
                k.v_cvt_pk_bf16_f32(e[0], r4[0], r4[1])
                k.v_and_b32(e[1], 0xffff, e[0])
                k.v_mov_b32(e[2], 0); k.v_mov_b32(e[3], 0)
                k.v_cndmask_b32(e[0], e[0], e[2], sHI); k.v_cndmask_b32(e[1], e[1], e[2], sHI)
                k.buffer_store_dwordx4(e, vL0, sWS, ext, mods="offen sc1", tag="st")
        k.s_waitcnt(mods="vmcnt(0) lgkmcnt(0)")
        k.s_barrier()
        with self.if_wave({0}):
            lp = k.label_name("ip"); dn = k.label_name("ig")
            k.s_mov_b64(exec_, 1)
            k.s_mov_b32(sSpin, 0)
            k.label(lp)
            k.buffer_load_dword(vTmp, "off", sDBG, 0, mods="sc1")
            k.s_add_u32(sSpin, sSpin, 1)
            k.s_waitcnt(mods="vmcnt(0)")
            k.v_readfirstlane_b32(sT[10], vTmp)
            k.s_cmp_lg_u32(sT[10], 0)
            k.s_cbranch_scc1(dn)
            k.s_cmp_lt_u32(sSpin, 0x40000)
            k.s_cbranch_scc1(lp)
            k.s_mov_b32(sErr, 1)
            k.label(dn)
            k.s_lshl_b32(sT[0], sI, 8); k.s_add_u32(sT[0], sT[0], C_H0R*256)
            k.buffer_atomic_add(vOne, "off", sWS, sT[0])
            with k.when("uA", {True}, lambda: k.s_cmp_lt_u32(sI, 3), "s_cbranch_scc0"):
                k.s_lshl_b32(sT[0], sJ, 8); k.s_add_u32(sT[0], sT[0], C_H0C*256)
                k.buffer_atomic_add(vOne, "off", sWS, sT[0])
            k.s_mov_b64(exec_, -1)
            k.s_lshl_b32(sCnt, sI, 8); k.s_add_u32(sCnt, sCnt, C_H0R*256)
            self.poll(sCnt, 16)
            k.s_lshl_b32(sCnt, sJ, 8); k.s_add_u32(sCnt, sCnt, C_H0C*256)
            self.poll(sCnt, 3)
        k.s_barrier()

    def weave(self, slots, fillers, start=0, per=3):
        k = self.k
        fi = 0
        for n, s in enumerate(slots):
            k.put(s)
            if n >= start:
                c = per(n) if callable(per) else per
                take = fillers[fi:fi+c]; fi += len(take)
                k.put(take)
        k.put(fillers[fi:])

    def ln_stats(self, st, mean, rstd, xext, t):
        k = self.k
        k.v_pk_add_f32(t[0:2], st[0:2], st[2:4]); k.v_pk_add_f32(t[2:4], st[4:6], st[6:8])
        k.v_pk_add_f32(t[0:2], t[0:2], t[2:4])
        k.v_pk_add_f32(t[2:4], st[8:10], st[10:12]); k.v_pk_add_f32(t[0:2], t[0:2], t[2:4])
        k.v_pk_add_f32(t[2:4], st[12:14], st[14:16]); k.v_pk_add_f32(t[0:2], t[0:2], t[2:4])
        self.cross_half_add(t[0], t[2])
        k.v_mul_f32(mean, 1.0/16, t[0])
        k.v_mov_b32(t[2], 0)
        for b in range(8):
            k.v_sub_f32(t[3], st[2*b], mean)
            k.v_fmac_f32(t[2], t[3], t[3])
        k.v_mov_b32(t[3], 32.0)
        k.v_fmac_f32(t[1], t[2], t[3])
        self.cross_half_add(t[1], t[2])
        k.v_mov_b32(t[2], 1e-5)
        k.v_fmac_f32(t[2], 1.0/512, t[1])
        k.v_rsq_f32(rstd, t[2])
        k.v_sub_f32(t[0], 0, mean)
        k.v_cvt_pk_bf16_f32(xext[0], t[0], t[0])
        k.v_lshlrev_b32(t[1], 16, xext[0])
        k.v_sub_f32(t[1], t[0], t[1])
        k.v_mov_b32(xext[2], 0); k.v_mov_b32(xext[3], 0)
        k.v_cvt_pk_bf16_f32(xext[1], t[1], xext[2])
        k.v_cndmask_b32(xext[0], xext[0], xext[2], sHI)
        k.v_cndmask_b32(xext[1], xext[1], xext[2], sHI)

    def load_x(self, n_s, st):
        k = self.k
        mb = sT[0]
        k.s_lshl_b32(mb, sI, 2); k.s_add_u32(mb, mb, sW)
        k.s_lshl_b32(sT[1], n_s, 18); k.s_lshl_b32(sT[2], mb, 12); k.s_add_u32(sT[1], sT[1], sT[2]); k.s_add_u32(sT[1], sT[1], SB)
        for c in range(4):
            k.buffer_load_dwordx4(st[4*c:4*c+4], vL0, sWS, sT[1], mods=f"offen offset:{c*KB} sc1" if c else "offen sc1")
        k.s_lshl_b32(sT[1], n_s, 21); k.s_lshl_b32(sT[2], mb, 15); k.s_add_u32(sT[1], sT[1], sT[2]); k.s_add_u32(sT[1], sT[1], XB)
        self.frag_loads(lambda t: A(4*t, 4), 32, sT[1], tag="x")

    def dma_wq(self):
        k = self.k
        with self.if_wave({1,2,3}):
            k.s_sub_u32(sT[0], sW, 1)
            k.s_mul_i32(sT[1], sJ, 3); k.s_add_u32(sT[1], sT[1], sT[0]); k.s_lshl_b32(sT[1], sT[1], 15); k.s_add_u32(sT[1], sT[1], WQ)
            k.s_lshl_b32(sT[2], sT[0], 15)
            self.dma(32, sT[1], sT[2], "dmaq")
            k.s_lshl_b32(sT[1], sJ, 2); k.s_add_u32(sT[1], sT[1], sT[0]); k.s_lshl_b32(sT[1], sT[1], 10); k.s_add_u32(sT[1], sT[1], WQE)
            k.s_lshl_b32(sT[2], sT[0], 10); k.s_add_u32(sT[2], sT[2], L_WQE)
            self.dma(1, sT[1], sT[2], "dmaq")

    def lds_addr(self, off):
        if off < 0x10000: return vL0, off
        if off < 0x20000: return vL1, off - 0x10000
        return vL2, off - 0x20000
    def ds_frag(self, dst, off):
        b, im = self.lds_addr(off)
        self.k.ds_read_b128(dst, b, mods=f"offset:{im}" if im else "")

    LOG2E = 1.4426950408889634
    def phi(self, src, rs, rc, dst, t, cE):
        k = self.k
        n = src.n
        for i in range(n): k.v_mul_f32(t[i], src[i], rc(i))
        for i in range(n): k.v_min_f32(t[i], 0, t[i])
        for i in range(n): k.v_exp_f32(t[i], t[i])
        for i in range(n): k.v_fma_f32(dst[i], src[i], rs(i), cE)
        for i in range(n): k.v_max_f32(dst[i], cE, dst[i])
        for i in range(n): k.v_add_f32(dst[i], dst[i], t[i])

    def p1(self):
        k = self.k
        st = V(8, 16); accK = V(24, 16); accV = V(40, 16); accQ = V(56, 16)
        wb = [V(72 + 4*i, 4) for i in range(6)]
        xext = V(96, 4); rD = V(100, 16); rcD = V(116, 16); tmp = V(132, 16); pk = V(148, 16)
        mean = V(164); rstd = V(165); t4 = V(166, 4); cE = V(170); rc = V(171)
        pkF = V(172, 8); vF = V(180, 8); ones = V(188, 4); kvD = V(192, 16); zD = V(208, 16)
        self.pqF = pqF = V(224, 8)
        with self.if_layer(0):
            self.dma_wq()
        k.s_lshl_b32(sT[5], sL, 1)
        self.load_x(sT[5], st)
        if self.o.get("fine1"): self.stamp()
        k.waittag("dmaq")
        k.s_barrier()
        if self.o.get("fine1"): self.stamp()
        with k.capture() as fl:
            self.ln_stats(st, mean, rstd, xext, t4)
            k.s_lshl_b32(sT[0], sW, 7); k.s_add_u32(sT[0], sT[0], L_MISC)
            k.v_lshrrev_b32(t4[0], 2, vM16); k.v_add_u32(t4[0], sT[0], t4[0])
            k.ds_write_b32(t4[0], rstd)
            k.v_lshrrev_b32(t4[1], 5, vLane); k.v_lshlrev_b32(t4[1], 4, t4[1]); k.v_add_u32(t4[1], sT[0], t4[1])
            for g in range(4): k.ds_read_b128(rD[4*g:4*g+4], t4[1], mods=f"offset:{32*g}" if g else "")
            k.v_mul_f32(rc, self.LOG2E, rstd)
            for i in range(16): k.v_mul_f32(rcD[i], self.LOG2E, rD[i])
            k.v_mov_b32(cE, 1e-6)
            for i in range(4): k.v_mov_b32(ones[i], 0x3f803f80)
        uses = []
        for t in range(32):
            uses.append((accK, t, L_SLOT*1 + t*KB)); uses.append((accV, t, L_SLOT*2 + t*KB))
        uses.append((accK, 32, L_WQE + 1*KB)); uses.append((accV, 32, L_WQE + 2*KB))
        D = 4
        slots = []
        pre = []
        with k.capture() as pre:
            for u in range(D): self.ds_frag(wb[u % 6], uses[u][2])
        k.put(pre)
        for u, (acc, t, off) in enumerate(uses):
            with k.capture() as s:
                xa = A(4*t, 4) if t < 32 else xext
                k.v_mfma_f32_32x32x16_bf16(acc, xa, wb[u % 6], 0 if t == 0 else acc)
                if u + D < len(uses): self.ds_frag(wb[(u + D) % 6], uses[u + D][2])
                if self.o.get("fine1") and u in (0, 16, 32, 48): self.stamp()
            slots.append(s)
        self.weave(slots, fl, start=6, per=2)
        self.stamp()
        self.phi(accK, lambda i: rD[i], lambda i: rcD[i], pk, tmp, cE)
        for i in range(16): k.v_mul_f32(accV[i], accV[i], rD[i])
        for i in range(8): k.v_cvt_pk_bf16_f32(pkF[i], pk[2*i], pk[2*i+1])
        for i in range(8): k.v_cvt_pk_bf16_f32(vF[i], accV[2*i], accV[2*i+1])
        k.v_mfma_f32_32x32x16_bf16(kvD, pkF[0:4], vF[0:4], 0)
        k.v_mfma_f32_32x32x16_bf16(zD, ones, pkF[0:4], 0)
        k.v_mfma_f32_32x32x16_bf16(kvD, pkF[4:8], vF[4:8], kvD)
        k.v_mfma_f32_32x32x16_bf16(zD, ones, pkF[4:8], zD)
        usesq = [(t, t*KB) for t in range(32)] + [(32, L_WQE)]
        for u in range(D): self.ds_frag(wb[u % 6], usesq[u][1])
        sel = tmp[0:8]
        for i in range(8): k.v_cndmask_b32(sel[i], kvD[i], kvD[8+i], sUP16)
        va = t4[0]; vz = t4[1]
        k.s_mul_i32(sT[0], sW, 2304); k.s_add_u32(sT[0], sT[0], L_KVS)
        k.v_add_u32(va, sT[0], vL0)
        k.ds_write_b128(va, sel[0:4]); k.ds_write_b128(va, sel[4:8], mods="offset:1024")
        k.v_lshrrev_b32(vz, 2, vM16); k.v_add_u32(vz, sT[0], vz)
        k.ds_write_b32(vz, zD[0], mods="offset:2048")
        k.s_waitcnt(mods="lgkmcnt(0)")
        k.s_barrier()
        slot = sA[0]
        k.s_lshl_b32(slot, sJ, 4); k.s_add_u32(slot, slot, sI); k.s_lshl_b32(slot, slot, 12)
        k.s_lshl_b32(sT[0], sL, 20); k.s_add_u32(slot, slot, sT[0]); k.s_add_u32(slot, slot, KVP)
        with self.if_wave({0,1}):
            k.s_lshl_b32(sT[0], sW, 10); k.s_add_u32(sT[1], sT[0], L_KVS)
            k.v_add_u32(va, sT[1], vL0)
            r = tmp
            for w in range(4): k.ds_read_b128(r[4*w:4*w+4], va, mods=f"offset:{2304*w}" if w else "")
            k.v_pk_add_f32(r[0:2], r[0:2], r[4:6]); k.v_pk_add_f32(r[2:4], r[2:4], r[6:8])
            k.v_pk_add_f32(r[8:10], r[8:10], r[12:14]); k.v_pk_add_f32(r[10:12], r[10:12], r[14:16])
            k.v_pk_add_f32(r[0:2], r[0:2], r[8:10]); k.v_pk_add_f32(r[2:4], r[2:4], r[10:12])
            k.s_add_u32(sT[1], slot, sT[0])
            k.buffer_store_dwordx4(r[0:4], vL0, sWS, sT[1], mods="offen sc1", tag="st")
        with self.if_wave({2}):
            k.v_lshrrev_b32(vz, 2, vM16); k.v_add_u32(va, L_KVS, vz)
            r = tmp
            for w in range(4): k.ds_read_b32(r[w], va, mods=f"offset:{2304*w + 2048}")
            k.v_add_f32(r[0], r[0], r[1]); k.v_add_f32(r[2], r[2], r[3]); k.v_add_f32(r[0], r[0], r[2])
            k.buffer_store_dword(r[0], vz, sWS, slot, mods="offen offset:2048 sc1", tag="st")
        self.cnt_off(sCnt, C_COL, sJ)
        self.arrive(sCnt)
        self.stamp()
        for nl in range(2):
            k.s_and_b32(sT[0], sW, 1); k.s_xor_b32(sT[0], sT[0], nl)
            k.s_lshl_b32(sT[1], sJ, 1); k.s_add_u32(sT[1], sT[1], sT[0]); k.s_lshl_b32(sT[1], sT[1], 15)
            k.s_lshl_b32(sT[2], sW, 13); k.s_add_u32(sT[1], sT[1], sT[2]); k.s_add_u32(sT[1], sT[1], WO)
            self.frag_loads(lambda t: A(128 + 4*(nl*8 + t), 4), 8, sT[1], tag="wo")
        for u, (t, off) in enumerate(usesq):
            xa = A(4*t, 4) if t < 32 else xext
            k.v_mfma_f32_32x32x16_bf16(accQ, wb[u % 6], xa, 0 if t == 0 else accQ)
            if u + D < len(usesq): self.ds_frag(wb[(u + D) % 6], usesq[u + D][1])
        self.phi(accQ, lambda i: rstd, lambda i: rc, pk, tmp, cE)
        for i in range(8): k.v_cvt_pk_bf16_f32(pqF[i], pk[2*i], pk[2*i+1])
        self.stamp()

    def attn_o(self):
        k = self.k
        pqF = self.pqF
        self.cnt_off(sCnt, C_COL, sJ)
        self.wait(sCnt, 16)
        self.stamp()
        P = V(8, 32); z = V(40, 2); t = V(44, 8); kvA = [V(56, 4), V(60, 4)]; acc = V(64, 32); ad = V(96, 4); D_ = [V(100, 16), V(116, 16)]; o = V(132, 8); of = V(140, 4)
        base = sA[0]
        k.s_lshl_b32(base, sJ, 4); k.s_lshl_b32(sT[0], sW, 2); k.s_add_u32(base, base, sT[0]); k.s_lshl_b32(base, base, 12)
        k.s_lshl_b32(sT[0], sL, 20); k.s_add_u32(base, base, sT[0]); k.s_add_u32(base, base, KVP)
        k.s_mov_b32(sT[1], base)
        for s in range(4):
            for p in range(2):
                k.buffer_load_dwordx4(P[8*s + 4*p: 8*s + 4*p + 4], vL0, sWS, sT[1], mods=f"offen offset:{p*KB} sc1" if p else "offen sc1")
            if s < 3: k.s_add_u32(sT[1], sT[1], 4096)
        vz = t[0]
        k.v_lshrrev_b32(vz, 2, vM16); k.v_lshrrev_b32(t[1], 5, vLane); k.v_lshlrev_b32(t[1], 12, t[1]); k.v_add_u32(vz, vz, t[1])
        k.buffer_load_dword(z[0], vz, sWS, base, mods="offen offset:2048 sc1")
        k.s_add_u32(sT[1], base, 8192)
        k.buffer_load_dword(z[1], vz, sWS, sT[1], mods="offen offset:2048 sc1")
        row = t[2]; hf = t[3]
        k.v_and_b32(row, 31, vLane); k.v_lshrrev_b32(hf, 5, vLane)
        k.v_and_b32(t[4], 0x1b, row); k.v_cmp_eq_u32(vcc, 16, t[4])
        k.s_mov_b64(sLO16R, vcc)
        k.v_cmp_gt_u32(vcc, 16, row)
        for h in range(2):
            for p in range(2):
                a_ = ad[2*h + p]
                k.v_lshlrev_b32(t[5], 4, hf); k.v_add_u32(t[5], 2048 + 64*h + 32*p, t[5])
                k.v_mov_b32(t[6], 2176)
                k.v_cndmask_b32(t[5], t[6], t[5], sLO16R)
                k.v_lshlrev_b32(t[6], 5, hf); k.v_add_u32(t[6], t[6], row); k.v_lshlrev_b32(t[6], 4, t[6]); k.v_add_u32(t[6], p*1024 + 256*h, t[6])
                k.v_cndmask_b32(a_, t[5], t[6], vcc)
                k.v_add_u32(a_, L_KVS, a_)
        for s in range(1, 4):
            for q in range(4): k.v_pk_add_f32(P[2*q:2*q+2], P[2*q:2*q+2], P[8*s + 2*q: 8*s + 2*q + 2])
        k.v_add_f32(z[0], z[0], z[1])
        self.cross_half_add(z[0], z[1])
        va = t[5]; vw = t[6]
        k.s_mul_i32(sT[0], sW, 2304); k.s_add_u32(sT[0], sT[0], L_KVS)
        k.v_add_u32(va, sT[0], vL0)
        k.ds_write_b128(va, P[0:4]); k.ds_write_b128(va, P[4:8], mods="offset:1024")
        k.v_lshrrev_b32(vw, 2, vM16); k.v_add_u32(vw, sT[0], vw)
        k.ds_write_b32(vw, z[0], mods="offset:2048")
        k.v_mov_b32(z[1], 0)
        k.ds_write_b32(vw, z[1], mods="offset:2176")
        k.s_waitcnt(mods="lgkmcnt(0)")
        k.s_barrier()
        for h in range(2):
            for p in range(2):
                for w in range(4):
                    k.ds_read_b128(acc[16*p + 4*w: 16*p + 4*w + 4], ad[2*h + p], mods=f"offset:{2304*w}" if w else "")
            for p in range(2):
                b = 16*p
                k.v_pk_add_f32(acc[b:b+2], acc[b:b+2], acc[b+4:b+6]); k.v_pk_add_f32(acc[b+2:b+4], acc[b+2:b+4], acc[b+6:b+8])
                k.v_pk_add_f32(acc[b+8:b+10], acc[b+8:b+10], acc[b+12:b+14]); k.v_pk_add_f32(acc[b+10:b+12], acc[b+10:b+12], acc[b+14:b+16])
                k.v_pk_add_f32(acc[b:b+2], acc[b:b+2], acc[b+8:b+10]); k.v_pk_add_f32(acc[b+2:b+4], acc[b+2:b+4], acc[b+10:b+12])
                k.v_cvt_pk_bf16_f32(kvA[h][2*p], acc[b], acc[b+1]); k.v_cvt_pk_bf16_f32(kvA[h][2*p+1], acc[b+2], acc[b+3])
        for h in range(2):
            k.v_mfma_f32_32x32x16_bf16(D_[h], kvA[h], pqF[4*h:4*h+4], 0)
        ob = sA[1]
        k.s_lshl_b32(ob, sI, 2); k.s_add_u32(ob, ob, sW); k.s_lshl_b32(ob, ob, 5); k.s_lshl_b32(sT[0], sJ, 1); k.s_add_u32(ob, ob, sT[0]); k.s_lshl_b32(ob, ob, 10)
        k.s_lshl_b32(sT[0], sL, 21); k.s_add_u32(ob, ob, sT[0]); k.s_add_u32(ob, ob, OB)
        for h in range(2):
            k.v_add_f32(t[0], 1e-6, D_[h][8])
            k.v_rcp_f32(t[0], t[0])
            for i in range(8): k.v_mul_f32(o[i], D_[h][i], t[0])
            for i in range(4): k.v_cvt_pk_bf16_f32(of[i], o[2*i], o[2*i+1])
            k.buffer_store_dwordx4(of, vL0, sWS, ob, mods=f"offen offset:{h*KB} sc1" if h else "offen sc1", tag="st")
        self.cnt_off(sCnt, C_RO, sI)
        self.arrive(sCnt)
        self.stamp()
        with self.if_wave({1,2,3}):
            k.s_sub_u32(sT[0], sW, 1)
            k.s_mul_i32(sT[1], sJ, 7); k.s_add_u32(sT[1], sT[1], sT[0]); k.s_lshl_b32(sT[1], sT[1], 15); k.s_add_u32(sT[1], sT[1], W13)
            k.s_lshl_b32(sT[2], sT[0], 15)
            self.dma(32, sT[1], sT[2], "dma13a")
        with self.if_wave({1}):
            k.s_lshl_b32(sT[1], sJ, 13); k.s_add_u32(sT[1], sT[1], W13E)
            k.s_mov_b32(sT[2], L_W13E)
            self.dma(7, sT[1], sT[2], "dma13a")
        self.wait(sCnt, 16)
        self.stamp()

    def tile_ids(self):
        k = self.k
        k.s_lshr_b32(sT[0], sJ, 3); k.s_lshl_b32(sT[0], sT[0], 1); k.s_lshl_b32(sT[1], sI, 2); k.s_add_u32(sT[0], sT[0], sT[1])
        k.s_lshr_b32(sT[1], sW, 1); k.s_add_u32(sA[8], sT[0], sT[1]); k.s_xor_b32(sT[1], sT[1], 1); k.s_add_u32(sA[9], sT[0], sT[1])
        k.s_and_b32(sT[0], sJ, 7); k.s_lshl_b32(sT[0], sT[0], 1); k.s_and_b32(sT[1], sW, 1)
        k.s_add_u32(sA[10], sT[0], sT[1]); k.s_xor_b32(sT[1], sT[1], 1); k.s_add_u32(sA[11], sT[0], sT[1])
    def res_loads(self, n_s, res):
        k = self.k
        k.s_lshl_b32(sT[0], n_s, 21); k.s_lshl_b32(sT[1], sA[8], 15); k.s_add_u32(sT[0], sT[0], sT[1])
        k.s_lshl_b32(sT[1], sA[10], 11); k.s_add_u32(sT[0], sT[0], sT[1]); k.s_add_u32(sT[0], sT[0], XB)
        k.buffer_load_dwordx4(res[0:4], vL0, sWS, sT[0], mods="offen sc1")
        k.buffer_load_dwordx4(res[4:8], vL0, sWS, sT[0], mods="offen offset:1024 sc1")
    def finish64(self, acc, res, nout_s, final_possible):
        k = self.k
        vw = V(200, 3); vr = V(203); rb = V(204, 48-0) if False else None
        for kk in range(1, 4):
            k.s_xor_b32(sT[0], sW, kk); k.s_mul_i32(sT[0], sT[0], 3); k.s_add_u32(sT[0], sT[0], kk-1); k.s_lshl_b32(sT[0], sT[0], 12); k.s_add_u32(sT[0], sT[0], L_RED)
            k.v_add_u32(vw[kk-1], sT[0], vL0)
        k.s_mul_i32(sT[0], sW, 3*4096); k.s_add_u32(sT[0], sT[0], L_RED)
        k.v_add_u32(vr, sT[0], vL0)
        for kk in range(1, 4):
            for q in range(4): k.ds_write_b128(vw[kk-1], acc[kk][4*q:4*q+4], mods=f"offset:{q*KB}" if q else "")
        k.s_waitcnt(mods="lgkmcnt(0)")
        k.s_barrier()
        for s in range(3):
            for q in range(4): k.ds_read_b128(acc[s+1][4*q:4*q+4], vr, mods=f"offset:{s*4096 + q*KB}" if (s or q) else "")
        f = acc[0]
        r16 = V(208, 16); tmp = V(224, 16); pk = V(240, 8); ms = V(248, 2)
        self.unpack(res, r16)
        for i in range(8): k.v_pk_add_f32(f[2*i:2*i+2], f[2*i:2*i+2], r16[2*i:2*i+2])
        for s in range(3):
            for i in range(8): k.v_pk_add_f32(f[2*i:2*i+2], f[2*i:2*i+2], acc[s+1][2*i:2*i+2])
        for i in range(8): k.v_cvt_pk_bf16_f32(pk[i], f[2*i], f[2*i+1])
        def inter():
            k.s_lshl_b32(sT[0], nout_s, 21); k.s_lshl_b32(sT[1], sA[8], 15); k.s_add_u32(sT[0], sT[0], sT[1])
            k.s_lshl_b32(sT[1], sA[10], 11); k.s_add_u32(sT[0], sT[0], sT[1]); k.s_add_u32(sT[0], sT[0], XB)
            self.s_stat_off(sT[1], nout_s, sA[8], sA[10], sT[2], None)
            self.unpack(pk, f)
            self.store_x_and_stats(pk, f, tmp, sT[0], sT[1], ms)
        if not final_possible:
            inter()
        else:
            with self.if_layer(0): inter()
            with self.if_layer(1):
                k.v_lshrrev_b32(tmp[0], 4, vM16); k.v_lshlrev_b32(tmp[0], 10, tmp[0])
                k.v_lshrrev_b32(tmp[1], 5, vLane); k.v_lshlrev_b32(tmp[1], 3, tmp[1]); k.v_add_u32(tmp[0], tmp[0], tmp[1])
                k.s_lshl_b32(sT[0], sA[8], 15); k.s_lshl_b32(sT[1], sA[10], 6); k.s_add_u32(sT[0], sT[0], sT[1])
                for g in range(4):
                    k.buffer_store_dwordx2(pk[2*g:2*g+2], tmp[0], sOUT, sT[0], mods=f"offen offset:{16*g}" if g else "offen")

    def p2b(self):
        k = self.k
        acc = [V(8 + 16*i, 16) for i in range(4)]; res = V(72, 8)
        self.tile_ids()
        h0 = sA[0]; h1 = sA[1]
        for hs, mb in ((h0, sA[8]), (h1, sA[9])):
            k.s_lshl_b32(hs, mb, 15); k.s_lshl_b32(sT[0], sW, 13); k.s_add_u32(hs, hs, sT[0])
            k.s_lshl_b32(sT[0], sL, 21); k.s_add_u32(hs, hs, sT[0]); k.s_add_u32(hs, hs, OB)
        for t in range(8):
            for ml, hs in enumerate((h0, h1)):
                im = (t % 4)*KB
                k.buffer_load_dwordx4(A(4*(ml*8 + t), 4), vL0, sWS, hs, mods=f"offen offset:{im} sc1" if im else "offen sc1")
            if t == 3:
                k.s_add_u32(h0, h0, 4*KB); k.s_add_u32(h1, h1, 4*KB)
        k.s_lshl_b32(sT[5], sL, 1)
        self.res_loads(sT[5], res)
        for t in range(8):
            for kk in range(4):
                ml, nl = kk >> 1, kk & 1
                k.v_mfma_f32_32x32x16_bf16(acc[kk], A(128 + 4*(nl*8 + t), 4), A(4*(ml*8 + t), 4), 0 if t == 0 else acc[kk])
        self.stamp()
        k.s_lshl_b32(sT[5], sL, 1); k.s_add_u32(sA[2], sT[5], 1)
        self.finish64(acc, res, sA[2], False)
        self.cnt_off(sCnt, C_RX1, sI)
        self.arrive(sCnt)
        self.stamp()
        with self.if_wave({1,2,3}):
            self.w2a_loads()
        self.wait(sCnt, 16)
        self.stamp()

    def w2_base(self, dst, nl):
        k = self.k
        k.s_mul_i32(dst, sA[10 + nl], 112*KB); k.s_mul_i32(sT[0], sW, 28*KB); k.s_add_u32(dst, dst, sT[0]); k.s_add_u32(dst, dst, W2)
    def w2a_loads(self):
        k = self.k
        for nl in range(2):
            self.w2_base(sT[1], nl)
            for jj in range(4):
                for b in range(4):
                    k.buffer_load_dwordx4(A(128 + 4*(nl*16 + jj*4 + b), 4), vL0, sWS, sT[1], mods=f"offen offset:{b*KB} sc1" if b else "offen sc1", tag="w2a")
                if jj < 3: k.s_add_u32(sT[1], sT[1], 7*KB)

    def silu_epi(self, acc, b, c1, c2, t, hp, hs):
        k = self.k
        G = acc[0:8]; U = acc[8:16]
        for i in range(8): k.v_mul_f32(t[i], G[i], c1)
        for i in range(8): k.v_exp_f32(t[i], t[i])
        for i in range(8): k.v_mul_f32(U[i], G[i], U[i])
        for i in range(8): k.v_add_f32(t[i], 1.0, t[i])
        for i in range(8): k.v_rcp_f32(t[i], t[i])
        for i in range(8): k.v_mul_f32(U[i], U[i], c2)
        for i in range(8): k.v_mul_f32(U[i], U[i], t[i])
        for i in range(4): k.v_cvt_pk_bf16_f32(hp[i], U[2*i], U[2*i+1])
        grp, im = divmod(b, 4)
        if b == 4: k.s_add_u32(hs, hs, 4*KB)
        k.buffer_store_dwordx4(hp, vL0, sWS, hs, mods=f"offen offset:{im*KB} sc1" if im else "offen sc1", tag=f"hst{b}")

    def p3(self):
        k = self.k
        st = V(8, 16); acc = [V(24 + 16*i, 16) for i in range(3)]
        wb = [V(72 + 4*i, 4) for i in range(6)]
        xext = V(96, 4); mean = V(100); rstd = V(101); t4 = V(102, 4); c1 = V(106); c2 = V(107)
        et = V(108, 8); hp = [V(116, 4), V(120, 4)]
        k.s_lshl_b32(sT[5], sL, 1); k.s_add_u32(sT[5], sT[5], 1)
        self.load_x(sT[5], st)
        def dma_blk(b):
            k.s_mul_i32(sT[1], sJ, 7); k.s_add_u32(sT[1], sT[1], b); k.s_lshl_b32(sT[1], sT[1], 15)
            k.s_lshl_b32(sT[2], sW, 13); k.s_add_u32(sT[1], sT[1], sT[2]); k.s_add_u32(sT[1], sT[1], W13)
            k.s_add_u32(sT[2], sT[2], (b % 4)*L_SLOT)
            self.dma(8, sT[1], sT[2], f"dma13_{b}")
        dma_blk(3)
        with self.if_wave({0}):
            self.w2a_loads()
        hs = sA[3]
        k.s_lshl_b32(hs, sI, 2); k.s_add_u32(hs, hs, sW); k.s_mul_i32(hs, hs, 112*KB)
        k.s_mul_i32(sT[0], sJ, 7*KB); k.s_add_u32(hs, hs, sT[0]); k.s_mul_i32(sT[0], sL, 7*1024*KB); k.s_add_u32(hs, hs, sT[0]); k.s_add_u32(hs, hs, HB_)
        k.waittag("dma13a")
        with k.capture() as fl0:
            self.ln_stats(st, mean, rstd, xext, t4)
            k.v_mul_f32(c1, -self.LOG2E, rstd)
            k.v_mul_f32(c2, rstd, rstd)
        uses = []
        for t in range(32):
            uses.append((0, t)); uses.append((1, t))
        uses.append((0, 32)); uses.append((1, 32))
        for b in range(2, 7):
            for t in range(33): uses.append((b, t))
        def off(b, t): return (L_W13E + b*KB) if t == 32 else ((b % 4)*L_SLOT + t*KB)
        D = 4
        n0 = 66
        starts = {b: n0 + 33*(b-2) for b in range(2, 7)}
        for u in range(D): self.ds_frag(wb[u % 6], off(*uses[u]))
        epi = {}
        for b in range(7):
            with k.capture() as e: self.silu_epi(acc[b % 3], b, c1, c2, et, hp[b % 2], hs)
            epi[b] = e
        actions = {}
        def add_action(u, fn): actions.setdefault(u, []).append(fn)
        def bar(tags):
            def f():
                if tags: k.waittag(*tags)
                k.s_barrier()
            return f
        add_action(n0 - 1, lambda: (k.s_waitcnt(mods="lgkmcnt(%d)" % D) if False else None))
        add_action(n0 - 1, bar(None)); add_action(n0 - 1, lambda: dma_blk(4)); add_action(n0 - 1, lambda: dma_blk(5))
        add_action(starts[3] - D - 1, bar(["dma13_3"]))
        add_action(starts[4] - D - 1, bar(["dma13_4"])); add_action(starts[4] - D - 1, lambda: dma_blk(6))
        add_action(starts[5] - D - 1, bar(["dma13_5"]))
        def ha():
            k.waittag("dma13_6", "hst0", "hst1", "hst2", "hst3")
            k.s_barrier()
            self.cnt_off(sCnt, C_RHA, sI)
            with self.if_wave({0}):
                k.s_mov_b64(exec_, 1)
                k.buffer_atomic_add(vOne, "off", sWS, sCnt)
                k.s_mov_b64(exec_, -1)
        add_action(starts[6] - D - 1, ha)
        fillers = {}
        def segment(lo, hi, fill, start, per):
            slots = []
            for u in range(lo, hi):
                b, t = uses[u]
                with k.capture() as s:
                    xa = A(4*t, 4) if t < 32 else xext
                    k.v_mfma_f32_32x32x16_bf16(acc[b % 3], wb[u % 6], xa, 0 if t == 0 else acc[b % 3])
                    if u + D < len(uses): self.ds_frag(wb[(u + D) % 6], off(*uses[u + D]))
                    for fn in actions.get(u, []): fn()
                slots.append(s)
            self.weave(slots, fill, start=start, per=per)
        fine = self.o.get("fine")
        segment(0, n0, fl0, 6, 2)
        if fine: self.stamp()
        segment(starts[2], starts[3], epi[0] + epi[1], 1, 4)
        if fine: self.stamp()
        segment(starts[3], starts[4], epi[2], 1, 2)
        if fine: self.stamp()
        segment(starts[4], starts[5], epi[3], 1, 2)
        if fine: self.stamp()
        segment(starts[5], starts[6], epi[4], 1, 2)
        if fine: self.stamp()
        segment(starts[6], len(uses), epi[5], 1, 2)
        self.stamp()
        k.put(epi[6])
        self.cnt_off(sCnt, C_RHB, sI)
        self.arrive(sCnt)
        self.stamp()

    def p4(self):
        k = self.k
        acc = [V(8 + 16*i, 16) for i in range(4)]; res = V(72, 8)
        w2b = V(80, 96)
        self.tile_ids()
        h0 = sA[0]; h1 = sA[1]
        def hbase():
            for hs, mb in ((h0, sA[8]), (h1, sA[9])):
                k.s_mul_i32(hs, mb, 112*KB); k.s_mul_i32(sT[0], sW, 28*KB); k.s_add_u32(hs, hs, sT[0])
                k.s_mul_i32(sT[0], sL, 7*1024*KB); k.s_add_u32(hs, hs, sT[0]); k.s_add_u32(hs, hs, HB_)
        hbase()
        self.cnt_off(sCnt, C_RHA, sI)
        self.wait(sCnt, 16)
        self.stamp()
        for jj in range(4):
            for b in range(4):
                for ml, hs in enumerate((h0, h1)):
                    k.buffer_load_dwordx4(A(4*(ml*16 + jj*4 + b), 4), vL0, sWS, hs, mods=f"offen offset:{b*KB} sc1" if b else "offen sc1")
            if jj < 3:
                k.s_add_u32(h0, h0, 7*KB); k.s_add_u32(h1, h1, 7*KB)
        for nl in range(2):
            self.w2_base(sT[1], nl)
            k.s_add_u32(sT[1], sT[1], 4*KB)
            for jj in range(4):
                for b in range(3):
                    r = 4*(nl*12 + jj*3 + b)
                    k.buffer_load_dwordx4(w2b[r:r+4], vL0, sWS, sT[1], mods=f"offen offset:{b*KB} sc1" if b else "offen sc1")
                if jj < 3: k.s_add_u32(sT[1], sT[1], 7*KB)
        k.s_lshl_b32(sT[5], sL, 1); k.s_add_u32(sT[5], sT[5], 1)
        self.res_loads(sT[5], res)
        first = True
        for jj in range(4):
            for b in range(4):
                for kk in range(4):
                    ml, nl = kk >> 1, kk & 1
                    k.v_mfma_f32_32x32x16_bf16(acc[kk], A(128 + 4*(nl*16 + jj*4 + b), 4), A(4*(ml*16 + jj*4 + b), 4), 0 if first else acc[kk])
                first = False
        hbase()
        k.s_add_u32(h0, h0, 4*KB); k.s_add_u32(h1, h1, 4*KB)
        self.cnt_off(sCnt, C_RHB, sI)
        self.wait(sCnt, 16)
        self.stamp()
        for jj in range(4):
            for b in range(3):
                for ml, hs in enumerate((h0, h1)):
                    k.buffer_load_dwordx4(A(4*(ml*12 + jj*3 + b), 4), vL0, sWS, hs, mods=f"offen offset:{b*KB} sc1" if b else "offen sc1")
            if jj < 3:
                k.s_add_u32(h0, h0, 7*KB); k.s_add_u32(h1, h1, 7*KB)
        for jj in range(4):
            for b in range(3):
                for kk in range(4):
                    ml, nl = kk >> 1, kk & 1
                    r = 4*(nl*12 + jj*3 + b)
                    k.v_mfma_f32_32x32x16_bf16(acc[kk], w2b[r:r+4], A(4*(ml*12 + jj*3 + b), 4), acc[kk])
        self.stamp()
        k.s_lshl_b32(sT[5], sL, 1); k.s_add_u32(sA[2], sT[5], 2)
        self.finish64(acc, res, sA[2], True)
        with self.if_layer(0):
            self.cnt_off(sCnt, C_RX2, sI)
            self.arrive(sCnt)
            self.stamp()
            self.dma_wq()
            self.wait(sCnt, 16)
            self.stamp()

    def build(self):
        k = self.k
        if self.stamps:
            k.s_mov_b32(S(82), 0)
            k.v_mov_b32(V(255), 0); k.v_mov_b32(V(254), 0)
        self.stamp()
        self.prologue()
        self.stamp()
        self.p0()
        self.stamp()
        phases = [self.p1, self.attn_o, self.p2b, self.p3, self.p4]
        k.label("L_layer")
        n = 0
        for ph in phases:
            ph()
            n += 1
            if self.stop_after is not None and self.stop_after % 5 == n % 5:
                lay = (self.stop_after - 1) // 5
                lab = k.label_name("cont")
                k.s_cmp_eq_u32(sL, lay); k.s_cbranch_scc1("L_fin")
        k.s_add_u32(sL, sL, 1)
        k.s_cmp_lt_u32(sL, 2)
        k.s_cbranch_scc1("L_layer")
        k.label("L_loop_end")
        k.label("L_fin")
        with self.if_wave({0}):
            k.s_mov_b64(exec_, 1)
            k.v_mov_b32(vTmp, sErr)
            k.s_cmp_lg_u32(sErr, 0)
            lab = k.label_name("noerr")
            k.s_cbranch_scc0(lab)
            k.buffer_store_dword(vTmp, "off", sDBG, 0, mods="offset:4")
            k.label(lab)
            k.s_mov_b64(exec_, -1)
        if self.stamps:
            self.stamp()
            k.s_lshl_b32(sT[0], S(2), 2); k.s_add_u32(sT[0], sT[0], sW); k.s_lshl_b32(sT[0], sT[0], 8); k.s_add_u32(sT[0], sT[0], STAMP)
            k.v_lshlrev_b32(vTmp, 2, vLane)
            k.buffer_store_dword(V(255), vTmp, sWS, sT[0], mods="offen")
            k.s_add_u32(sT[0], sT[0], 0x80000)
            k.buffer_store_dword(V(254), vTmp, sWS, sT[0], mods="offen")
            if "dbgst" in self.o:
                sel = [0, 1, 2, 3, 8, 11, 12, 13, 15, 17, 18, 19, 27, 28, 31, 33]
                with k.when("wg0", {True}, lambda: (k.s_or_b32(sT[0], S(2), sW), k.s_cmp_eq_u32(sT[0], int(self.o["dbgst"]))), "s_cbranch_scc0"):
                    for n, ix in enumerate(sel):
                        k.v_readlane_b32(sT[1], V(255), ix)
                        k.v_writelane_b32(V(253), sT[1], n)
                    k.v_lshlrev_b32(vTmp, 2, vLane)
                    k.s_mov_b64(exec_, 0xffff)
                    k.buffer_store_dword(V(253), vTmp, sDBG, 0, mods="offen")
                    k.s_mov_b64(exec_, -1)
        k.s_waitcnt(mods="vmcnt(0)")
        k.label("L_end")
        k.s_endpgm()

def generate(path, **kw):
    g = Gen(**kw)
    g.build()
    cfgs = []
    for w in range(4):
        for nf, ext, uA in ((8, True, True), (8, True, False), (8, False, False), (7, False, False)):
            for wg0 in ((True, False) if w == 0 else (False,)):
                cfgs.append(dict(w=w, nf=nf, ext=ext, uA=uA, wg0=wg0))
    lines = finalize(g.k, cfgs, loop=("L_layer", "L_loop_end", [dict(L=0), dict(L=1)]))
    hdr = f"""; Fused persistent kernel: 2 x (linear attention block + SwiGLU block), generated by my own generator script.
; @launch grid=(256,1,1) block=(256,1,1) lds={LDS_BYTES}
.amdgcn_target "amdgcn-amd-amdhsa--gfx950"
.text
.globl {NAME}
.p2align 8
.type {NAME},@function
{NAME}:
"""
    ftr = f"""
.section .rodata,"a"
.p2align 6
.amdhsa_kernel {NAME}
  .amdhsa_next_free_vgpr 512
  .amdhsa_next_free_sgpr 102
  .amdhsa_accum_offset 256
  .amdhsa_group_segment_fixed_size 0
  .amdhsa_kernarg_size 80
  .amdhsa_user_sgpr_count 2
  .amdhsa_user_sgpr_kernarg_segment_ptr 1
  .amdhsa_system_sgpr_workgroup_id_x 1
  .amdhsa_float_denorm_mode_32 3
.end_amdhsa_kernel
"""
    open(path, "w").write(hdr + "\n".join(lines) + ftr)
    return lines

if __name__ == "__main__":
    import argparse
    ap = argparse.ArgumentParser()
    ap.add_argument("-o", default="out.s")
    ap.add_argument("--stop", type=int, default=None)
    ap.add_argument("--stamps", action="store_true")
    ap.add_argument("--opt", action="append", default=[])
    a = ap.parse_args()
    opts = {}
    for o in a.opt:
        kk, _, vv = o.partition("=")
        opts[kk] = (int(vv) if vv.lstrip("-").isdigit() else vv) if vv else True
    l = generate(a.o, stop_after=a.stop, stamps=a.stamps, opts=opts)
    print(len(l), "lines")
```
